```python
import torch

def _softmax(x, axis=-1):
    return torch.softmax(x, dim=axis)
def _gelu(x):
    return torch.nn.functional.gelu(x, approximate="tanh")
def _silu(x):
    return torch.nn.functional.silu(x)
def _sigmoid(x):
    return torch.sigmoid(x)
def _layernorm(x, axis=-1, eps=1e-5):
    m = x.mean(dim=axis, keepdim=True)
    v = x.var(dim=axis, keepdim=True, unbiased=False)
    return (x - m) / torch.sqrt(v + eps)
def _scatter_add(tgt, idx, src, axis=0):
    return tgt.clone().index_add_(axis, idx, src)
def _segment_sum(src, seg, n):
    out = torch.zeros((n,) + src.shape[1:], dtype=src.dtype)
    return out.index_add_(0, seg, src)
def _pad(x, pw):
    flat = tuple(v for pair in reversed(pw) for v in pair)
    return torch.nn.functional.pad(x, flat)

kernel_name = 'standalone__mha_softmax__near_ridge'

def setup_inputs():

    _w = (lambda a: (lambda t: t.to(torch.bfloat16) if t.is_floating_point() else t)(torch.as_tensor(a)))
    B, H, Sq, Sk, D = 8, 32, 288, 2048, 128
    return {
        "q": _w((lambda *s: torch.randn(*s, dtype=torch.bfloat16) * 0.8)(B, H, Sq, D)),
        "k": _w((lambda *s: torch.randn(*s, dtype=torch.bfloat16) * 0.8)(B, H, Sk, D)),
        "v": _w((lambda *s: torch.randn(*s, dtype=torch.bfloat16) * 0.05)(B, H, Sk, D)),
    }

def reference(q, k, v):
    scale = q.shape[-1] ** -0.5
    scores = torch.einsum("bhqd,bhkd->bhqk", q, k) * scale
    p = _softmax(scores, axis=-1)
    return torch.einsum("bhqk,bhkd->bhqd", p, v)
```

```python
import re

TRANS = ("v_exp_f32", "v_log_f32", "v_rcp_f32", "v_rsq_f32", "v_sqrt_f32", "v_sin_f32", "v_cos_f32")

_reg_re = re.compile(r"^(-|\|)?(abs\()?([vas])(\d+)\)?\|?$")
_rng_re = re.compile(r"^([vas])\[(\d+):(\d+)\]$")


def regs_of(tok):
    tok = tok.strip()
    if tok in ("vcc", "exec", "m0", "scc"):
        return [tok]
    if tok in ("vcc_lo", "vcc_hi"):
        return ["vcc"]
    m = _rng_re.match(tok.lstrip("-"))
    if m:
        return ["%s%d" % (m.group(1), i) for i in range(int(m.group(2)), int(m.group(3)) + 1)]
    m = _reg_re.match(tok)
    if m:
        return ["%s%d" % (m.group(3), int(m.group(4)))]
    return []


class Ins:
    __slots__ = ("text", "mn", "kind", "rd", "wr", "cost", "ops", "meta", "srcc", "passes", "label")

    def __init__(self, text, **meta):
        self.text = text.strip()
        self.meta = meta
        self.label = self.text.endswith(":") or self.text.startswith(".") or self.text.startswith(";")
        self.rd, self.wr, self.srcc = [], [], []
        self.passes = 0
        self.cost = 4
        if self.label:
            self.mn, self.kind, self.ops, self.cost = "", "label", [], 0
            return
        t = self.text.split(";")[0].strip()
        parts = t.split(None, 1)
        self.mn = mn = parts[0]
        rest = parts[1] if len(parts) > 1 else ""
        ops = [o.strip() for o in rest.split(",")] if rest else []
        mods = []
        if ops:
            sp = ops[-1].split()
            if sp:
                ops[-1] = sp[0]
                mods = sp[1:]
        self.ops = ops
        R = regs_of
        if mn.startswith("v_mfma"):
            self.kind = "mfma"
            self.passes = 8 if "32x32x16" in mn else 4
            self.cost = 8
            self.wr = R(ops[0])
            self.rd = R(ops[1]) + R(ops[2]) + R(ops[3])
            self.srcc = R(ops[3])
        elif mn.startswith("v_permlane"):
            self.kind = "valu"
            self.wr = R(ops[0]) + R(ops[1])
            self.rd = R(ops[0]) + R(ops[1])
        elif mn.startswith("v_cmp"):
            self.kind = "valu"
            self.wr = R(ops[0])
            for o in ops[1:]:
                self.rd += R(o)
        elif mn.startswith("v_"):
            self.kind = "trans" if mn.split("_e")[0] in TRANS or mn in TRANS else "valu"
            if self.kind == "trans":
                self.cost = 8
            self.wr = R(ops[0])
            srcs = ops[1:]
            if mn.startswith(("v_add_co", "v_addc_co", "v_sub_co", "v_subb_co")):
                self.wr += R(ops[1])
                srcs = ops[2:]
            for o in srcs:
                self.rd += R(o)
            if mn.startswith(("v_fmac", "v_pk_fmac", "v_dot2c")):
                self.rd += R(ops[0])
            if mn.startswith("v_cndmask") and len(ops) == 3:
                self.rd += ["vcc"]
        elif mn.startswith("ds_read") or mn.startswith("ds_bpermute") or mn.startswith("ds_swizzle"):
            self.kind = "ldsr"
            self.wr = R(ops[0])
            for o in ops[1:]:
                self.rd += R(o)
        elif mn.startswith("ds_write") or mn.startswith("ds_or") or mn.startswith("ds_add") or mn.startswith("ds_max"):
            self.kind = "ldsw"
            for o in ops:
                self.rd += R(o)
        elif mn.startswith("buffer_load"):
            if "lds" in mods:
                self.kind = "dma"
                for o in ops:
                    self.rd += R(o)
                self.rd += ["m0"]
            else:
                self.kind = "vload"
                self.wr = R(ops[0])
                for o in ops[1:]:
                    self.rd += R(o)
        elif mn.startswith("buffer_store"):
            self.kind = "vstore"
            for o in ops:
                self.rd += R(o)
        elif mn == "s_waitcnt":
            self.kind = "wait"
        elif mn == "s_barrier":
            self.kind = "barrier"
        elif mn == "s_nop":
            self.kind = "nop"
            self.cost = 4 * (int(ops[0]) + 1)
        elif mn.startswith("s_load") or mn.startswith("s_memtime") or mn.startswith("s_memrealtime"):
            self.kind = "smem"
            self.wr = R(ops[0])
            for o in ops[1:]:
                self.rd += R(o)
        elif mn.startswith(("s_cbranch", "s_branch", "s_endpgm", "s_setprio", "s_sleep")):
            self.kind = "branch"
            if "vcc" in mn:
                self.rd = ["vcc"]
        elif mn.startswith("s_cmp"):
            self.kind = "salu"
            for o in ops:
                self.rd += R(o)
            self.wr = ["scc"]
        elif mn.startswith("s_"):
            self.kind = "salu"
            self.wr = R(ops[0])
            for o in ops[1:]:
                self.rd += R(o)
            if "saveexec" in mn:
                self.wr += ["exec"]
        else:
            raise ValueError("unknown instruction " + text)

    def states(self):
        if self.kind == "label":
            return 0
        if self.kind == "nop":
            return int(self.ops[0]) + 1
        return 1

    def __repr__(self):
        return self.text


def parse_wait(ins):
    vm = lg = None
    m = re.search(r"vmcnt\((\d+)\)", ins.text)
    if m:
        vm = int(m.group(1))
    m = re.search(r"lgkmcnt\((\d+)\)", ins.text)
    if m:
        lg = int(m.group(1))
    return vm, lg


def check(seq, name="", verbose=True):
    probs = []
    n = len(seq)
    for i, a in enumerate(seq):
        if a.kind == "label":
            continue
        dist = 0
        aw = set(a.wr)
        for j in range(i + 1, min(n, i + 40)):
            b = seq[j]
            if b.kind == "label":
                continue
            need = 0
            why = ""
            brd, bwr = set(b.rd), set(b.wr)
            if a.kind in ("valu", "trans"):
                vw = {r for r in aw if r[0] in "va" and r not in ("vcc",)}
                sw = {r for r in aw if r[0] == "s" or r == "vcc"}
                if b.kind == "mfma" and vw & brd:
                    need, why = 2, "VALU->MFMA"
                if b.mn.startswith("v_permlane") and vw & brd:
                    need, why = max(need, 2), "VALU->permlane"
                if b.mn.startswith(("v_readfirstlane", "v_readlane")) and vw & brd:
                    need, why = max(need, 1), "VALU->readlane"
                if a.kind == "trans" and b.kind in ("valu",) and vw & brd:
                    need, why = max(need, 1), "trans->VALU"
                if b.kind in ("valu", "trans") and sw & brd:
                    need, why = max(need, 2), "VALU sgpr->VALU"
                if b.kind in ("dma", "vload", "vstore") and sw & brd:
                    need, why = max(need, 5), "VALU sgpr->VMEM"
            if a.kind == "mfma":
                big = a.passes == 8
                if b.kind == "mfma":
                    ab = set(b.rd) - set(b.srcc) | (set(regs_of(b.ops[1])) | set(regs_of(b.ops[2])))
                    ab = set(regs_of(b.ops[1])) | set(regs_of(b.ops[2]))
                    if aw & ab:
                        need, why = (12 if big else 8), "MFMA D->MFMA AB"
                    if aw & set(b.srcc):
                        if a.wr == b.srcc and a.passes == b.passes:
                            pass
                        else:
                            need, why = max(need, 10 if big else 6), "MFMA D->MFMA C overlap"
                    elif aw & bwr and not (a.wr == b.wr):
                        need, why = max(need, 10 if big else 6), "MFMA D->MFMA D partial"
                elif b.kind in ("valu", "trans", "ldsr", "ldsw", "vload", "vstore", "dma"):
                    if aw & (brd | bwr):
                        need, why = (12 if big else 8), "MFMA D->VALU/mem"
                    if b.kind in ("valu", "trans") and set(a.srcc) & bwr:
                        need, why = max(need, 7 if big else 3), "MFMA C WAR"
            if a.kind == "salu" and "m0" in aw and b.kind == "dma":
                need, why = 1, "m0->dma"
            if a.kind == "vstore" and ("x4" in a.mn or "x3" in a.mn):
                data = set(regs_of(a.ops[0]))
                if data & bwr:
                    need, why = 2, "store data WAR"
            if a.kind == "salu" and "exec" in aw:
                pass
            if need > dist:
                probs.append("%s: hazard %s need %d have %d: [%d] %s  ->  [%d] %s" % (name, why, need, dist, i, a.text, j, b.text))
            dist += b.states()
            if dist >= 20:
                break
    lds = []
    vm = []
    for i, b in enumerate(seq):
        if b.kind == "label":
            continue
        if b.kind == "wait":
            v, l = parse_wait(b)
            if v is not None:
                while len(vm) > v:
                    vm.pop(0)
            if l is not None:
                while len(lds) > l:
                    lds.pop(0)
            continue
        touch = set(b.rd) | set(b.wr)
        for (d, k) in lds:
            if d & touch:
                probs.append("%s: missing lgkmcnt: [%d] %s -> [%d] %s" % (name, k, seq[k].text, i, b.text))
        for (d, k) in vm:
            if d & touch:
                probs.append("%s: missing vmcnt: [%d] %s -> [%d] %s" % (name, k, seq[k].text, i, b.text))
        if b.kind in ("ldsr", "ldsw"):
            lds.append((set(b.wr), i))
        elif b.kind == "smem":
            lds.append((set(b.wr), i))
        elif b.kind in ("vload", "vstore", "dma"):
            vm.append((set(b.wr), i))
            if len(vm) > 63:
                probs.append("%s: more than 63 VMEM outstanding at [%d]" % (name, i))
    if verbose:
        for p in probs[:40]:
            print(p)
    return probs
```

```python
import sys, math, struct
from asmir import Ins, check

NAME = "standalone__mha_softmax__near_ridge_kernel"

KF = 8
VF = 40
SA = 72
SB = 88
CMA = 104
CMB = 120
Q9 = 136
S9 = 168
CM9 = 176
P9 = 184
K9F = 188
V9F = 204
AK = 220
AV = 228
AK9 = 232
AV9 = 236
DK0, DK1, DV = 240, 241, 242
LA, LB, L9A, L9B = 243, 244, 245, 246
T0 = 247
OA, OB, O9, QA, QB = 0, 64, 128, 192, 224

LDS_FLAG = 131072
LDS_BYTES = 131072 + 2048


def v(n, c=1):
    return "v%d" % n if c == 1 else "v[%d:%d]" % (n, n + c - 1)


def a(n, c=1):
    return "a%d" % n if c == 1 else "a[%d:%d]" % (n, n + c - 1)


def f32bits(x):
    return struct.unpack("<I", struct.pack("<f", x))[0]


class Opt:
    nt_kv = " nt"
    nt_q = " nt"
    nt_o = " nt"
    stamps = False


class Prog:
    def __init__(self):
        self.L = []

    def __call__(self, text, **meta):
        for t in text.strip().split("\n"):
            t = t.strip()
            if t:
                self.L.append(Ins(t, **meta))

    def extend(self, lst):
        self.L.extend(lst)


def mfma_qk(S, CM, Q, ks, first_c=None):
    c = (v(CM, 16) if first_c is None else first_c) if ks == 0 else v(S, 16)
    return "v_mfma_f32_32x32x16_bf16 %s, %s, %s, %s" % (v(S, 16), v(KF + 4 * ks, 4), a(Q + 4 * ks, 4), c)


def mfma_pv(O, S, ks, dt):
    return "v_mfma_f32_32x32x16_bf16 %s, %s, %s, %s" % (a(O + 16 * dt, 16), v(VF + 4 * (ks * 4 + dt), 4), v(S + 8 * ks, 4), a(O + 16 * dt, 16))


def mfma_q9(half, step, kf=K9F, sreg=S9, first_c=None):
    c = (v(CM9 + 4 * half, 4) if first_c is None else first_c) if step == 0 else v(sreg + 4 * half, 4)
    return "v_mfma_f32_16x16x32_bf16 %s, %s, %s, %s" % (v(sreg + 4 * half, 4), v(kf + 4 * step, 4), v(Q9 + 16 * half + 4 * step, 4), c)


def mfma_p9(dt):
    return "v_mfma_f32_32x32x16_bf16 %s, %s, %s, %s" % (a(O9 + 16 * dt, 16), v(V9F + 4 * dt, 4), v(P9, 4), a(O9 + 16 * dt, 16))


class Op:
    def __init__(self, fn, tag, sect):
        self.fn, self.tag, self.sect = fn, tag, sect


def build_template(opt):
    M = []
    for ks in range(8):
        M.append((mfma_qk(SA, CMA, QA, ks), "qkA0", 1.0))
    for ks in range(2):
        for dt in range(4):
            M.append((mfma_pv(OB, SB, ks, dt), "pvBprev", 1.0))
    for half in range(2):
        for step in range(4):
            M.append((mfma_q9(half, step), "q9", 0.5))
    for ks in range(8):
        M.append((mfma_qk(SB, CMB, QB, ks), "qkB0", 1.0))
    for ks in range(2):
        for dt in range(4):
            M.append((mfma_pv(OA, SA, ks, dt), "pvA0", 1.0))
    for ks in range(8):
        M.append((mfma_qk(SA, CMA, QA, ks), "qkA1", 1.0))
    for ks in range(2):
        for dt in range(4):
            M.append((mfma_pv(OB, SB, ks, dt), "pvB0", 1.0))
    for ks in range(8):
        M.append((mfma_qk(SB, CMB, QB, ks), "qkB1", 1.0))
    for dt in range(4):
        M.append((mfma_p9(dt), "p9", 1.0))
    for ks in range(2):
        for dt in range(4):
            M.append((mfma_pv(OA, SA, ks, dt), "pvA1", 1.0))
    NG = len(M)
    assert NG == 76
    tstart = []
    t = 0.0
    for m in M:
        tstart.append(t)
        t += m[2]
    assert t == 72.0
    gaps = [{"head": [], "body": [], "tail": []} for _ in range(NG)]

    def gap_at(time):
        wrap = int(time // 72)
        tt = time - 72 * wrap
        g = max(i for i in range(NG) if tstart[i] <= tt + 1e-9)
        return g + NG * wrap

    def put(g, sect, fn, tag):
        if g >= NG:
            gaps[g - NG][sect].append(Op(fn, tag + ":prev", sect))
        else:
            gaps[g][sect].append(Op(fn, tag, sect))

    units = []
    def tile_units(tag, S, Lr):
        out = []
        for i in range(16):
            cv = None
            if i % 2 == 1:
                j = i // 2
                cv = (S + 8 * (j // 4) + j % 4, S + i - 1, S + i)
            out.append((tag, S + i, Lr, cv))
        return out
    u9 = []
    for half in range(2):
        for r in range(4):
            cv = None
            if r % 2 == 1:
                cv = (P9 + 2 * half + r // 2, S9 + 4 * half + r - 1, S9 + 4 * half + r)
            u9.append(("sm9", S9 + 4 * half + r, L9A if half == 0 else L9B, cv))
    units = tile_units("smA0", SA, LA) + u9[:4] + tile_units("smB0", SB, LB) + u9[4:] + tile_units("smA1", SA, LA) + tile_units("smB1", SB, LB)
    T_START = 10.0
    for n, (tag, sreg, lreg, cv) in enumerate(units):
        tm = T_START + n
        g = gap_at(tm)
        put(g, "body", lambda u, s=sreg: "v_exp_f32 %s, %s" % (v(s), v(s)), tag)
        g2 = gap_at(tm + 1)
        if M[g2 % NG][2] == 0.5:
            g2 = g2 + 1
        gg = gaps[g2 % NG]
        tag2 = tag + (":prev" if g2 >= NG else "")
        gg.setdefault("body2", []).append(Op(lambda u, s=sreg, l=lreg: "v_add_f32 %s, %s, %s" % (v(l), v(l), v(s)), tag2, "body2"))
        if cv:
            gg["body2"].append(Op(lambda u, c=cv: "v_cvt_pk_bf16_f32 %s, %s, %s" % (v(c[0]), v(c[1]), v(c[2])), tag2, "body2"))
    put(57, "tail", lambda u: "v_permlane16_swap_b32 %s, %s" % (v(P9), v(P9 + 2)), "sm9")
    put(59, "tail", lambda u: "v_permlane16_swap_b32 %s, %s" % (v(P9 + 1), v(P9 + 3)), "sm9")

    def kr(boff, ks):
        return lambda u: "ds_read_b128 %s, %s offset:%d" % (v(KF + 4 * ks, 4), v(AK + ks), ((2 * u + boff) % 8) * 8192)

    def vr(boff, j, jj):
        ks, dt = j // 4, j % 4
        return lambda u: "ds_read_b64_tr_b16 %s, %s offset:%d" % (v(VF + 4 * j + 2 * jj, 2), v(AV + dt), ((2 * u + boff) % 8) * 8192 + (16 * ks + 8 * jj) * 256)

    def k9r(step):
        return lambda u: "ds_read_b128 %s, %s offset:%d" % (v(K9F + 4 * step, 4), v(AK9 + step), ((2 * u) % 8) * 8192)

    def v9r(dt, jj):
        return lambda u: "ds_read_b64_tr_b16 %s, %s offset:%d" % (v(V9F + 4 * dt + 2 * jj, 2), v(AV9 + dt), ((2 * u) % 8) * 8192 + 8 * jj * 256)

    for step in range(4):
        put(4 + step, "head", k9r(step), "k9r")
    def place_v(base, boff, late):
        pos = []
        g = base
        cnt = [1, 2, 1, 2, 1, 2, 1, 2]
        r = 0
        plan = []
        for k in range(8):
            for c in range(cnt[k]):
                if r // 2 <= k:
                    plan.append(base + k)
                    r += 1
        while r < 16:
            plan.append(late.pop(0))
            r += 1
        for r, g in enumerate(plan):
            assert g >= base + r // 2
            put(g, "head", vr(boff, r // 2, r % 2), "vr%d" % boff)
    place_v(8, 0, [24, 25, 26, 27])
    for ks in range(8):
        put(28 + ks, "head", kr(1, ks), "kr1")
    i = 0
    for dt in range(4):
        for jj in range(2):
            put(36 + i, "head", v9r(dt, jj), "v9r")
            i += 1
    place_v(48, 1, [56, 57, 58, 59])
    for ks in range(8):
        put(60 + ks, "head", kr(2, ks), "kr2")

    put(0, "head", lambda u: "s_waitcnt vmcnt(14)", "sync")
    put(0, "head", lambda u: "s_barrier", "sync")

    def dma_group(g, isv, blk):
        base = 65536 if isv else 0
        srd = "s[16:19]" if isv else "s[12:15]"
        so = "s31" if blk == 0 else "s32"
        put(g - 1, "tail", lambda u: "s_add_u32 m0, s30, %d" % (base + ((2 * u + 6 + blk) % 8) * 8192), "dma")
        put(g, "head", lambda u: "buffer_load_dwordx4 %s, %s, %s offen%s lds" % (v(DV if isv else DK0), srd, so, opt.nt_kv), "dma")
        put(g + 1, "head", lambda u: "buffer_load_dwordx4 %s, %s, %s offen offset:1024%s lds" % (v(DV if isv else DK1), srd, so, opt.nt_kv), "dma")
    dma_group(2, False, 0)
    dma_group(44, False, 1)
    dma_group(46, True, 0)
    dma_group(70, True, 1)
    put(72, "tail", lambda u: "s_add_u32 s31, s31, 16384", "dma")
    put(73, "tail", lambda u: "s_add_u32 s32, s32, 16384", "dma")
    return M, gaps


def gap_ops(gp):
    return gp["head"] + gp["body"] + gp.get("body2", []) + gp["tail"]


def linearize(M, gaps, u, waits=None, filt=None):
    out = []
    for g, (mt, tag, sz) in enumerate(M):
        if waits and g in waits:
            out.append(Ins("s_waitcnt lgkmcnt(%d)" % waits[g], gap=g - 1))
        if filt is None or filt(tag):
            out.append(Ins(mt, gap=g, tag=tag))
        for op in gap_ops(gaps[g]):
            if filt is None or filt(op.tag):
                out.append(Ins(op.fn(u), gap=g, tag=op.tag))
    return out


def compute_waits(M, gaps, pos=(0, 16, 32, 40, 64)):
    NG = len(M)
    seq = linearize(M, gaps, 0) + linearize(M, gaps, 1) + linearize(M, gaps, 2) + linearize(M, gaps, 3)
    per = len(seq) // 4
    absg = [ins.meta["gap"] + NG * (i // per) for i, ins in enumerate(seq)]
    waits = {}
    allpos = sorted(p + NG * k for k in range(5) for p in pos)
    for p in pos:
        P0 = p + NG * 2
        nxt = min(x for x in allpos if x > P0)
        i0 = next(i for i, ins in enumerate(seq) if ins.kind == "mfma" and absg[i] == P0)
        reads = [i for i in range(i0) if seq[i].kind == "ldsr"]
        newest = -1
        for i, ins in enumerate(seq):
            if ins.kind == "mfma" and P0 <= absg[i] < nxt:
                touch = set(ins.rd)
                for r in range(i - 1, -1, -1):
                    if seq[r].kind == "ldsr" and set(seq[r].wr) & touch:
                        touch -= set(seq[r].wr)
                        assert r < i0, ("read issued after the wait that must cover it", seq[r].text, ins.text)
                        newest = max(newest, r)
                    if i - r > per:
                        break
        n = sum(1 for r in reads if r > newest)
        assert n <= 15
        waits[p] = n
        if P0 - absg[newest] < 4:
            print("warning: wait at %d covers a read issued only %d gaps earlier" % (p, P0 - absg[newest]))
    return waits


def print_gaps(M, gaps, waits):
    tot = 0
    for g, (mt, tag, sz) in enumerate(M):
        ops = [Ins(o.fn(0)) for o in gap_ops(gaps[g])]
        c = sum(o.cost for o in ops) + (4 if (g + 1) % len(M) in waits else 0)
        cap = 24 if sz == 1.0 else 8
        tot += max(c + 8, cap + 8)
        print("%2d %-8s %2d/%2d %s %s%s" % (g, tag, c, cap, "!!" if c > cap else "  ", " ".join(o.mn.replace("v_", "").replace("_f32", "").replace("buffer_load_dwordx4", "DMA").replace("ds_read_", "") for o in ops),
                                          " +W%d" % waits[(g + 1) % len(M)] if (g + 1) % len(M) in waits else ""))
    print("est cycles/iter", tot)


def max_reduce16(P, S, m, t):
    P("v_max3_f32 %s, %s, %s, %s" % (v(m), v(S), v(S + 1), v(S + 2)))
    for i in range(3, 15, 2):
        P("v_max3_f32 %s, %s, %s, %s" % (v(m), v(m), v(S + i), v(S + i + 1)))
    P("v_max_f32 %s, %s, %s" % (v(m), v(m), v(S + 15)))


def cross32(P, m, t, op):
    P("v_mov_b32 %s, %s" % (v(t), v(m)))
    P("s_nop 1")
    P("v_permlane32_swap_b32 %s, %s" % (v(m), v(t)))
    P("%s %s, %s, %s" % (op, v(m), v(m), v(t)))


def cross16(P, m, t, op):
    P("v_mov_b32 %s, %s" % (v(t), v(m)))
    P("s_nop 1")
    P("v_permlane16_swap_b32 %s, %s" % (v(m), v(t)))
    P("%s %s, %s, %s" % (op, v(m), v(m), v(t)))


def set_cm(P, CM, n, m):
    P("v_xor_b32 %s, 0x80000000, %s" % (v(CM), v(m)))
    for i in range(1, n):
        P("v_mov_b32 %s, %s" % (v(CM + i), v(CM)))


def prescale(P, src, n, dst_a=None):
    for i in range(n):
        t = T0 + 2 * (i % 4)
        P("v_lshlrev_b32 %s, 16, %s" % (v(t), v(src + i)))
        P("v_and_b32 %s, 0xffff0000, %s" % (v(t + 1), v(src + i)))
        P("v_mul_f32 %s, s34, %s" % (v(t), v(t)))
        P("v_mul_f32 %s, s34, %s" % (v(t + 1), v(t + 1)))
        P("v_cvt_pk_bf16_f32 %s, %s, %s" % (v(src + i), v(t), v(t + 1)))
        if dst_a is not None:
            P("v_accvgpr_write_b32 %s, %s" % (a(dst_a + i), v(src + i)))


def dma_pro(P, opt, isv, blk):
    base = 65536 if isv else 0
    srd = "s[16:19]" if isv else "s[12:15]"
    P("s_add_u32 m0, s30, %d" % (base + blk * 8192))
    P("s_mov_b32 s35, %d" % (blk * 8192))
    P("buffer_load_dwordx4 %s, %s, s35 offen%s lds" % (v(DV if isv else DK0), srd, opt.nt_kv))
    P("buffer_load_dwordx4 %s, %s, s35 offen offset:1024%s lds" % (v(DV if isv else DK1), srd, opt.nt_kv))


def zero_state(P):
    for i in range(192):
        P("v_accvgpr_write_b32 %s, 0" % a(i))
    for i in range(32):
        P("v_mov_b32 %s, 0" % v(VF + i))
    for r in (LA, LB, L9A, L9B):
        P("v_mov_b32 %s, 0" % v(r))


def gen(opt, fname, verbose=False):
    M, gaps = build_template(opt)
    waits = compute_waits(M, gaps)
    if verbose:
        print_gaps(M, gaps, waits)
    P = Prog()
    cscale = math.log2(math.e) / math.sqrt(128.0)
    P("""
    s_cmp_ge_u32 s2, 256
    s_cbranch_scc1 L_end
    s_load_dwordx4 s[4:7], s[0:1], 0
    s_load_dwordx4 s[8:11], s[0:1], 16
    v_lshrrev_b32 v1, 6, v0
    v_and_b32 v2, 63, v0
    v_and_b32 v3, 31, v0
    v_readfirstlane_b32 s3, v1
    v_lshrrev_b32 v4, 5, v2
    v_and_b32 v5, 15, v0
    v_lshrrev_b32 v6, 4, v2
    """)
    P("v_lshl_add_u32 %s, v1, 6, v3" % v(T0))
    P("v_lshlrev_b32 %s, 8, %s" % (v(T0), v(T0)))
    P("v_lshl_add_u32 %s, v4, 4, %s" % (v(T0), v(T0)))
    P("v_lshlrev_b32 %s, 8, v5" % v(T0 + 1))
    P("v_lshl_add_u32 %s, v6, 4, %s" % (v(T0 + 1), v(T0 + 1)))
    P("v_add_u32 %s, 0x10000, %s" % (v(T0 + 1), v(T0 + 1)))
    P("v_lshl_add_u32 v7, v1, 3, v6")
    P("v_and_b32 %s, 15, v7" % v(T0 + 2))
    P("v_xor_b32 %s, v5, %s" % (v(T0 + 3), v(T0 + 2)))
    P("v_lshlrev_b32 %s, 4, %s" % (v(T0 + 3), v(T0 + 3)))
    P("v_lshl_add_u32 %s, v7, 8, %s" % (v(DK0), v(T0 + 3)))
    P("v_xor_b32 %s, 64, %s" % (v(DK1), v(DK0)))
    P("v_lshlrev_b32 %s, 2, v6" % v(T0 + 2))
    P("v_xor_b32 %s, v5, %s" % (v(T0 + 3), v(T0 + 2)))
    P("v_lshlrev_b32 %s, 4, %s" % (v(T0 + 3), v(T0 + 3)))
    P("v_lshl_add_u32 %s, v7, 8, %s" % (v(DV), v(T0 + 3)))
    P("""
    s_lshl_b32 s30, s3, 11
    s_mov_b32 s33, 0
    s_mov_b32 s34, 0x%08x
    s_lshl_b32 s28, s2, 19
    s_lshr_b32 s29, s2, 13
    s_mul_i32 s36, s2, 73728
    s_waitcnt lgkmcnt(0)
    s_add_u32 s20, s4, s36
    s_addc_u32 s21, s5, 0
    s_mov_b32 s22, 73728
    s_mov_b32 s23, 0x20000
    s_add_u32 s12, s6, s28
    s_addc_u32 s13, s7, s29
    s_mov_b32 s14, 524288
    s_mov_b32 s15, 0x20000
    s_add_u32 s16, s8, s28
    s_addc_u32 s17, s9, s29
    s_mov_b32 s18, 524288
    s_mov_b32 s19, 0x20000
    s_add_u32 s24, s10, s36
    s_addc_u32 s25, s11, 0
    s_mov_b32 s26, 73728
    s_mov_b32 s27, 0x20000
    s_mov_b32 s37, 8192
    s_mov_b32 s38, 4096
    """ % f32bits(cscale))
    for ks in range(8):
        P("buffer_load_dwordx4 %s, %s, s[20:23], 0 offen offset:%d%s" % (v(SA + 4 * ks, 4), v(T0), ks * 32, opt.nt_q))
    dma_pro(P, opt, False, 0)
    for ks in range(8):
        P("buffer_load_dwordx4 %s, %s, s[20:23], s37 offen offset:%d%s" % (v(CMA + 4 * ks, 4), v(T0), ks * 32, opt.nt_q))
    for half in range(2):
        for step in range(4):
            P("buffer_load_dwordx4 %s, %s, s[20:23], %s offen offset:%d%s" % (v(Q9 + 16 * half + 4 * step, 4), v(T0 + 1), "s38" if half else "0", step * 64, opt.nt_q))
    for (isv, blk) in [(0, 1), (1, 0), (1, 1), (0, 2), (0, 3), (1, 2), (1, 3), (0, 4), (0, 5), (1, 4), (1, 5)]:
        dma_pro(P, opt, bool(isv), blk)
    P("s_mov_b32 s31, %d" % (3 * 16384))
    P("s_mov_b32 s32, %d" % (3 * 16384 + 8192))
    for ks in range(8):
        P("v_add_u32 %s, %d, v4" % (v(T0 + 2), 2 * ks))
        P("v_xor_b32 %s, %s, v5" % (v(T0 + 2), v(T0 + 2)))
        P("v_lshlrev_b32 %s, 4, %s" % (v(T0 + 2), v(T0 + 2)))
        P("v_lshl_add_u32 %s, v3, 8, %s" % (v(AK + ks), v(T0 + 2)))
    P("v_lshrrev_b32 %s, 2, v5" % v(T0 + 2))
    P("v_lshl_add_u32 %s, v4, 2, %s" % (v(T0 + 3), v(T0 + 2)))
    P("v_lshlrev_b32 %s, 8, %s" % (v(T0 + 3), v(T0 + 3)))
    P("v_and_b32 %s, 1, v0" % v(T0 + 4))
    P("v_lshl_add_u32 %s, %s, 3, %s" % (v(T0 + 3), v(T0 + 4), v(T0 + 3)))
    P("v_add_u32 %s, 0x10000, %s" % (v(T0 + 3), v(T0 + 3)))
    P("v_and_b32 %s, 1, v6" % v(T0 + 4))
    P("v_lshlrev_b32 %s, 1, %s" % (v(T0 + 4), v(T0 + 4)))
    P("v_bfe_u32 %s, v0, 1, 1" % v(T0 + 5))
    P("v_add_u32 %s, %s, %s" % (v(T0 + 4), v(T0 + 4), v(T0 + 5)))
    for dt in range(4):
        P("v_xor_b32 %s, %d, %s" % (v(T0 + 5), dt, v(T0 + 2)))
        P("v_lshl_add_u32 %s, %s, 2, %s" % (v(T0 + 5), v(T0 + 5), v(T0 + 4)))
        P("v_lshl_add_u32 %s, %s, 4, %s" % (v(AV + dt), v(T0 + 5), v(T0 + 3)))
    P("s_lshl_b32 s39, s3, 12")
    for dt in range(4):
        P("v_add_u32 %s, s39, %s" % (v(AV9 + dt), v(AV + dt)))
    P("v_and_b32 %s, 3, v5" % v(T0 + 2))
    P("v_bfe_u32 %s, v5, 2, 1" % v(T0 + 3))
    P("v_lshl_or_b32 %s, %s, 3, %s" % (v(T0 + 2), v(T0 + 3), v(T0 + 2)))
    P("v_bfe_u32 %s, v5, 3, 1" % v(T0 + 3))
    P("v_lshl_or_b32 %s, %s, 2, %s" % (v(T0 + 2), v(T0 + 3), v(T0 + 2)))
    for step in range(4):
        P("v_add_u32 %s, %d, v6" % (v(T0 + 3), 4 * step))
        P("v_xor_b32 %s, %s, %s" % (v(T0 + 3), v(T0 + 3), v(T0 + 2)))
        P("v_lshlrev_b32 %s, 4, %s" % (v(T0 + 3), v(T0 + 3)))
        P("v_lshl_add_u32 %s, %s, 8, %s" % (v(V9F + step), v(T0 + 2), v(T0 + 3)))
        P("v_add_u32 %s, s39, %s" % (v(AK9 + step), v(V9F + step)))
    zero_state(P)
    P("s_waitcnt vmcnt(40)")
    prescale(P, SA, 32, QA)
    P("s_waitcnt vmcnt(30)")
    P("s_barrier")
    for ks in range(8):
        P("ds_read_b128 %s, %s" % (v(KF + 4 * ks, 4), v(AK + ks)))
    for step in range(4):
        P("ds_read_b128 %s, %s" % (v(K9F + 4 * step, 4), v(V9F + step)))
    prescale(P, CMA, 32, QB)
    P("s_waitcnt lgkmcnt(0)")
    for ks in range(8):
        P(mfma_qk(SA, CMA, QA, ks, first_c="0"))
    for ks in range(8):
        P(mfma_qk(SB, CMB, QB, ks, first_c="0"))
    P("s_waitcnt vmcnt(22)")
    prescale(P, Q9, 32)
    P("s_nop 1")
    for half in range(2):
        for step in range(4):
            P(mfma_q9(half, step, first_c="0"))
    mA, mB, m9a, m9b, tt = V9F + 4, V9F + 5, V9F + 6, V9F + 7, V9F + 8
    max_reduce16(P, SA, mA, tt)
    max_reduce16(P, SB, mB, tt)
    for (m, s) in ((m9a, S9), (m9b, S9 + 4)):
        P("v_max3_f32 %s, %s, %s, %s" % (v(m), v(s), v(s + 1), v(s + 2)))
        P("v_max_f32 %s, %s, %s" % (v(m), v(m), v(s + 3)))
    P("L_setmax:")
    cross32(P, mA, tt, "v_max_f32")
    cross32(P, mB, tt, "v_max_f32")
    for m in (m9a, m9b):
        cross16(P, m, tt, "v_max_f32")
        cross32(P, m, tt, "v_max_f32")
    set_cm(P, CMA, 16, mA)
    set_cm(P, CMB, 16, mB)
    set_cm(P, CM9, 4, m9a)
    set_cm(P, CM9 + 4, 4, m9b)
    for i in range(16):
        P("v_mov_b32 %s, 0xf149f2ca" % v(SB + i))
    pre = linearize(M, gaps, 3, None, lambda t: t == "smB1")
    for ins in pre:
        P.L.append(ins)
        P("s_nop 0")
    P("s_nop 1")
    pro_end = len(P.L)
    P(".p2align 6")
    P("L_loop:")
    body = []
    for u in range(4):
        body += linearize(M, gaps, u, waits)
    P.extend(body)
    P("s_cmp_lt_u32 s31, %d" % (35 * 16384))
    P("s_cbranch_scc1 L_loop")
    loop_end = len(P.L)
    dr = linearize(M, gaps, 0, None, lambda t: t in ("smB1:prev",))
    P("s_nop 7")
    for ins in dr:
        P.L.append(ins)
        P("s_nop 0")
    P("s_nop 1")
    for ks in range(2):
        for dt in range(4):
            P(mfma_pv(OB, SB, ks, dt))
    P("s_waitcnt vmcnt(0) lgkmcnt(0)")
    P("s_barrier")
    wa, wb, wl, oa, oa9, chk = T0, T0 + 1, T0 + 2, T0 + 3, T0 + 4, T0 + 5
    assert chk % 2 == 0
    tt = KF
    inv = VF
    P("v_lshlrev_b32 %s, 4, v2" % v(wa))
    P("v_lshl_add_u32 %s, v1, 14, %s" % (v(wb), v(wa)))
    for q in range(16):
        P("ds_write_b128 %s, %s offset:%d" % (v(wb), a(O9 + 4 * q, 4), q * 1024))
        if q == 11:
            P("s_waitcnt lgkmcnt(4)")
    for l in (L9A, L9B):
        cross16(P, l, tt, "v_add_f32")
        cross32(P, l, tt, "v_add_f32")
    P("v_and_b32 %s, 16, v0" % v(tt))
    P("v_cmp_eq_u32 vcc, 0, %s" % v(tt))
    P("v_lshlrev_b32 %s, 2, v0" % v(wl))
    P("v_add_u32 %s, 0x10000, %s" % (v(wl), v(wl)))
    P("v_cndmask_b32 %s, %s, %s, vcc" % (v(L9A), v(L9B), v(L9A)))
    P("ds_write_b32 %s, %s" % (v(wl), v(L9A)))
    P("v_lshl_add_u32 %s, v1, 6, v3" % v(oa))
    P("v_lshlrev_b32 %s, 8, %s" % (v(oa), v(oa)))
    P("v_lshl_add_u32 %s, v4, 4, %s" % (v(oa), v(oa)))
    P("v_lshlrev_b32 %s, 8, v3" % v(oa9))
    P("v_lshl_add_u32 %s, v4, 4, %s" % (v(oa9), v(oa9)))
    P("v_lshl_add_u32 %s, v1, 6, %s" % (v(oa9), v(oa9)))
    P("v_add_u32 %s, 0x10000, %s" % (v(oa9), v(oa9)))
    P("v_mov_b32 %s, 0" % v(chk))
    P("v_mov_b32 %s, 0" % v(chk + 1))
    P("s_mov_b32 s40, 0x5f800000")

    def out_tile(get, l, addr, soff, ndt, first):
        P("v_cmp_nle_f32 %s, %s, s40" % ("s[42:43]" if first else "vcc", v(l)))
        P("v_rcp_f32 %s, %s" % (v(inv), v(l)))
        if not first:
            P("s_or_b64 s[42:43], s[42:43], vcc")
        else:
            P("s_nop 0")
        P("v_mov_b32 %s, %s" % (v(inv + 1), v(inv)))
        for dt in range(ndt):
            for gp in range(2):
                x = SA + 16 * gp
                src = get(dt * 16 + gp * 8, x)
                for i in range(4):
                    P("v_pk_mul_f32 %s, %s, %s" % (v(x + 2 * i, 2), v(src + 2 * i, 2), v(inv, 2)))
                for i in range(4):
                    P("v_cvt_pk_bf16_f32 %s, %s, %s" % (v(x + 8 + i), v(x + 2 * i), v(x + 2 * i + 1)))
                for i in range(4):
                    P("v_pk_fma_f32 %s, %s, 0, %s" % (v(chk, 2), v(x + 2 * i, 2), v(chk, 2)))
                P("v_permlane32_swap_b32 %s, %s" % (v(x + 8), v(x + 10)))
                P("v_permlane32_swap_b32 %s, %s" % (v(x + 9), v(x + 11)))
                P("buffer_store_dwordx4 %s, %s, s[24:27], %s offen offset:%d%s" % (v(x + 8, 4), v(addr), soff, dt * 64 + gp * 32, opt.nt_o))

    def get_acc(O):
        def g(base, x):
            for i in range(8):
                P("v_accvgpr_read_b32 %s, %s" % (v(x + i), a(O + base + i)))
            return x
        return g
    cross32(P, LA, tt, "v_add_f32")
    cross32(P, LB, tt, "v_add_f32")
    out_tile(get_acc(OA), LA, oa, "0", 4, True)
    P("s_waitcnt lgkmcnt(0)")
    P("s_barrier")
    P("v_lshl_add_u32 %s, v1, 12, %s" % (v(wb), v(wa)))
    P("v_lshlrev_b32 %s, 2, v2" % v(wl))
    P("v_add_u32 %s, 0x10000, %s" % (v(wl), v(wl)))
    R9 = [CMA, CMB, K9F, V9F]
    for ws in range(4):
        P("ds_read_b32 %s, %s offset:%d" % (v(S9 + ws), v(wl), ws * 256))
    for ws in range(4):
        for q in range(4):
            P("ds_read_b128 %s, %s offset:%d" % (v(R9[ws] + 4 * q, 4), v(wb), ws * 16384 + q * 1024))
        if ws == 1:
            P("s_waitcnt lgkmcnt(6)")
    out_tile(get_acc(OB), LB, oa, "s37", 4, False)
    P("s_waitcnt lgkmcnt(0)")
    for i in range(8):
        P("v_pk_add_f32 %s, %s, %s" % (v(R9[0] + 2 * i, 2), v(R9[0] + 2 * i, 2), v(R9[1] + 2 * i, 2)))
        P("v_pk_add_f32 %s, %s, %s" % (v(R9[2] + 2 * i, 2), v(R9[2] + 2 * i, 2), v(R9[3] + 2 * i, 2)))
    for i in range(8):
        P("v_pk_add_f32 %s, %s, %s" % (v(R9[0] + 2 * i, 2), v(R9[0] + 2 * i, 2), v(R9[2] + 2 * i, 2)))
    P("v_add_f32 %s, %s, %s" % (v(S9), v(S9), v(S9 + 1)))
    P("v_add_f32 %s, %s, %s" % (v(S9 + 2), v(S9 + 2), v(S9 + 3)))
    P("v_add_f32 %s, %s, %s" % (v(S9), v(S9), v(S9 + 2)))
    out_tile(lambda base, x: R9[0] + base, S9, oa9, "0", 1, False)
    P("v_cmp_u_f32 vcc, %s, %s" % (v(chk), v(chk + 1)))
    P("s_cmp_lg_u32 s33, 0")
    P("s_cbranch_scc1 L_end")
    P("s_or_b64 s[42:43], s[42:43], vcc")
    P("s_cmp_lg_u64 s[42:43], 0")
    P("s_cselect_b32 s41, 1, 0")
    P("s_lshl_b32 s44, s3, 2")
    P("s_add_u32 s44, s44, %d" % LDS_FLAG)
    P("v_mov_b32 %s, s41" % v(tt))
    P("v_mov_b32 %s, s44" % v(tt + 1))
    P("v_mov_b32 %s, %d" % (v(tt + 2), LDS_FLAG))
    P("ds_write_b32 %s, %s" % (v(tt + 1), v(tt)))
    P("s_waitcnt lgkmcnt(0)")
    P("s_barrier")
    P("ds_read_b128 %s, %s" % (v(tt + 4, 4), v(tt + 2)))
    P("s_waitcnt lgkmcnt(0)")
    P("v_or3_b32 %s, %s, %s, %s" % (v(tt), v(tt + 4), v(tt + 5), v(tt + 6)))
    P("v_or_b32 %s, %s, %s" % (v(tt), v(tt), v(tt + 7)))
    P("s_nop 0")
    P("v_readfirstlane_b32 s41, %s" % v(tt))
    P("s_nop 3")
    P("s_cmp_eq_u32 s41, 0")
    P("s_cbranch_scc1 L_end")
    main_end = len(P.L)
    P("s_mov_b32 s33, 1")
    P("s_waitcnt vmcnt(0)")
    kg, k9g = T0, T0 + 1
    P("v_lshlrev_b32 %s, 8, v3" % v(kg))
    P("v_lshl_add_u32 %s, v4, 4, %s" % (v(kg), v(kg)))
    P("v_lshlrev_b32 %s, 8, v5" % v(k9g))
    P("v_lshl_add_u32 %s, v6, 4, %s" % (v(k9g), v(k9g)))
    for m in (mA, mB, m9a, m9b):
        P("v_mov_b32 %s, 0xff800000" % v(m))
    P("s_mov_b32 s45, 0")
    P("L_maxloop:")
    P("s_add_u32 s46, s45, 4096")
    for ks in range(8):
        P("buffer_load_dwordx4 %s, %s, s[12:15], s45 offen offset:%d" % (v(KF + 4 * ks, 4), v(kg), ks * 32))
    for grp in range(2):
        for step in range(4):
            P("buffer_load_dwordx4 %s, %s, s[12:15], %s offen offset:%d" % (v(VF + 16 * grp + 4 * step, 4), v(k9g), "s46" if grp else "s45", step * 64))
    P("s_waitcnt vmcnt(0)")
    for ks in range(8):
        P(mfma_qk(SA, CMA, QA, ks, first_c="0"))
    for ks in range(8):
        P(mfma_qk(SB, CMB, QB, ks, first_c="0"))
    for grp in range(2):
        for half in range(2):
            for step in range(4):
                P(mfma_q9(half, step, kf=VF + 16 * grp, sreg=CMA + 8 * grp, first_c="0"))
    P("s_nop 7")
    P("s_nop 3")
    for (m, S) in ((mA, SA), (mB, SB)):
        for i in range(0, 16, 2):
            P("v_max3_f32 %s, %s, %s, %s" % (v(m), v(m), v(S + i), v(S + i + 1)))
    for grp in range(2):
        for half, m in ((0, m9a), (1, m9b)):
            s = CMA + 8 * grp + 4 * half
            P("v_max3_f32 %s, %s, %s, %s" % (v(m), v(m), v(s), v(s + 1)))
            P("v_max3_f32 %s, %s, %s, %s" % (v(m), v(m), v(s + 2), v(s + 3)))
    P("s_add_u32 s45, s45, 8192")
    P("s_cmp_lt_u32 s45, 524288")
    P("s_cbranch_scc1 L_maxloop")
    P("s_barrier")
    for (isv, blk) in [(0, 0), (0, 1), (1, 0), (1, 1), (0, 2), (0, 3), (1, 2), (1, 3), (0, 4), (0, 5), (1, 4), (1, 5)]:
        dma_pro(P, opt, bool(isv), blk)
    P("s_mov_b32 s31, %d" % (3 * 16384))
    P("s_mov_b32 s32, %d" % (3 * 16384 + 8192))
    zero_state(P)
    P("s_waitcnt vmcnt(22)")
    P("s_barrier")
    for ks in range(8):
        P("ds_read_b128 %s, %s" % (v(KF + 4 * ks, 4), v(AK + ks)))
    P("s_waitcnt lgkmcnt(0)")
    P("s_branch L_setmax")
    P("L_end:")
    P("s_endpgm")

    L = P.L
    lp0 = next(i for i, x in enumerate(L) if x.text == "L_loop:")
    probs = check(L[:loop_end] + L[lp0:main_end], "main")
    sm = next(i for i, x in enumerate(L) if x.text == "L_setmax:")
    ml = next(i for i, x in enumerate(L) if x.text == "L_maxloop:")
    me = next(i for i, x in enumerate(L) if x.text == "s_cbranch_scc1 L_maxloop")
    probs += check(L[main_end - 30:me + 1] + L[ml:-2] + L[sm:lp0 + 200], "fallback")
    if probs:
        print("PROBLEMS:", len(probs))
    hdr = "; @launch grid=(256,1,1) block=(256,1,1) lds=%d\n" % LDS_BYTES
    hdr += '.amdgcn_target "amdgcn-amd-amdhsa--gfx950"\n.text\n.globl %s\n.p2align 8\n.type %s,@function\n%s:\n' % (NAME, NAME, NAME)
    ftr = """.section .rodata,"a"
.p2align 6
.amdhsa_kernel %s
  .amdhsa_next_free_vgpr 512
  .amdhsa_next_free_sgpr 64
  .amdhsa_accum_offset 256
  .amdhsa_group_segment_fixed_size 0
  .amdhsa_kernarg_size 48
  .amdhsa_user_sgpr_count 2
  .amdhsa_user_sgpr_kernarg_segment_ptr 1
  .amdhsa_system_sgpr_workgroup_id_x 1
.end_amdhsa_kernel
""" % NAME
    txt = hdr + "\n".join(("" if x.label else "    ") + x.text for x in L) + "\n" + ftr
    open(fname, "w").write(txt)
    return len(probs)


if __name__ == "__main__":
    o = Opt()
    gen(o, sys.argv[1] if len(sys.argv) > 1 else "k1.s", verbose=True)
```

```python
import sys, math, struct
from asmir import Ins, check

NAME = "standalone__mha_softmax__near_ridge_kernel"

KF = 8
VF = 40
SA = 72
SB = 88
CMA = 104
CMB = 120
Q9 = 136
S9 = 168
CM9 = 176
P9 = 184
K9F = 188
V9F = 204
AK = 220
AV = 228
AK9 = 232
AV9 = 236
DK0, DK1, DV = 240, 241, 242
LA, LB, L9A, L9B = 243, 244, 245, 246
T0 = 247
OA, OB, O9, QA, QB = 0, 64, 128, 192, 224

LDS_X = 131072
LDS_FLAG = LDS_X + 1024
LDS_BYTES = LDS_X + 16384


def v(n, c=1):
    return "v%d" % n if c == 1 else "v[%d:%d]" % (n, n + c - 1)


def a(n, c=1):
    return "a%d" % n if c == 1 else "a[%d:%d]" % (n, n + c - 1)


def f32bits(x):
    return struct.unpack("<I", struct.pack("<f", x))[0]


class Opt:
    nt_kv = " nt"
    nt_q = " nt"
    nt_o = " nt"
    stamps = False
    cK = 5
    cV = 4
    dma_gaps = (2, 44, 46, 70)
    codepf = True


class Prog:
    def __init__(self):
        self.L = []
        self.nst = 0

    def stamp(self, opt, real=False):
        if not opt.stamps:
            return
        self("s_waitcnt lgkmcnt(0)")
        self("%s s[56:57]" % ("s_memrealtime" if real else "s_memtime"))
        self("s_waitcnt lgkmcnt(0)")
        self("s_mov_b32 s%d, s56" % (60 + self.nst))
        self.nst += 1

    def __call__(self, text, **meta):
        for t in text.strip().split("\n"):
            t = t.strip()
            if t:
                self.L.append(Ins(t, **meta))

    def extend(self, lst):
        self.L.extend(lst)


def mfma_qk(S, CM, Q, ks, first_c=None):
    c = (v(CM, 16) if first_c is None else first_c) if ks == 0 else v(S, 16)
    return "v_mfma_f32_32x32x16_bf16 %s, %s, %s, %s" % (v(S, 16), v(KF + 4 * ks, 4), a(Q + 4 * ks, 4), c)


def mfma_pv(O, S, ks, dt):
    return "v_mfma_f32_32x32x16_bf16 %s, %s, %s, %s" % (a(O + 16 * dt, 16), v(VF + 4 * (ks * 4 + dt), 4), v(S + 8 * ks, 4), a(O + 16 * dt, 16))


def mfma_q9(half, step, kf=K9F, sreg=S9, first_c=None):
    c = (v(CM9 + 4 * half, 4) if first_c is None else first_c) if step == 0 else v(sreg + 4 * half, 4)
    return "v_mfma_f32_16x16x32_bf16 %s, %s, %s, %s" % (v(sreg + 4 * half, 4), v(kf + 4 * step, 4), v(Q9 + 16 * half + 4 * step, 4), c)


def mfma_p9(dt):
    return "v_mfma_f32_32x32x16_bf16 %s, %s, %s, %s" % (a(O9 + 16 * dt, 16), v(V9F + 4 * dt, 4), v(P9, 4), a(O9 + 16 * dt, 16))


class Op:
    def __init__(self, fn, tag, sect):
        self.fn, self.tag, self.sect = fn, tag, sect


def dma_order(opt):
    same = opt.cK == opt.cV
    return [(False, opt.cK, "s31"), (False, opt.cK + 1, "s32"), (True, opt.cV, "s31" if same else "s49"), (True, opt.cV + 1, "s32" if same else "s50")]


def soff_regs(opt):
    return ["s31", "s32"] if opt.cK == opt.cV else ["s31", "s32", "s49", "s50"]


def pro_order(opt):
    seq = []
    for s in range(-4, 0):
        for (isv, boff, so) in dma_order(opt):
            b = 2 * s + boff
            if b >= 0:
                seq.append((isv, b))
    return seq


def barrier_vmcnt(opt):
    seq = []
    S = 10
    for s in range(S):
        for (isv, boff, so) in dma_order(opt):
            seq.append((isv, 2 * s + boff))
    need = [(True, 2 * S), (True, 2 * S + 1), (False, 2 * S + 1), (False, 2 * S + 2), (False, 2 * S)]
    newest = max(seq.index(x) for x in need)
    return 2 * (len(seq) - 1 - newest)


def init_soff(P, opt):
    P("s_mov_b32 s31, %d" % (opt.cK * 8192))
    P("s_mov_b32 s32, %d" % ((opt.cK + 1) * 8192))
    if opt.cK != opt.cV:
        P("s_mov_b32 s49, %d" % (opt.cV * 8192))
        P("s_mov_b32 s50, %d" % ((opt.cV + 1) * 8192))


def build_template(opt):
    M = []
    for ks in range(8):
        M.append((mfma_qk(SA, CMA, QA, ks), "qkA0", 1.0))
    for ks in range(2):
        for dt in range(4):
            M.append((mfma_pv(OB, SB, ks, dt), "pvBprev", 1.0))
    for half in range(2):
        for step in range(4):
            M.append((mfma_q9(half, step), "q9", 0.5))
    for ks in range(8):
        M.append((mfma_qk(SB, CMB, QB, ks), "qkB0", 1.0))
    for ks in range(2):
        for dt in range(4):
            M.append((mfma_pv(OA, SA, ks, dt), "pvA0", 1.0))
    for ks in range(8):
        M.append((mfma_qk(SA, CMA, QA, ks), "qkA1", 1.0))
    for ks in range(2):
        for dt in range(4):
            M.append((mfma_pv(OB, SB, ks, dt), "pvB0", 1.0))
    for ks in range(8):
        M.append((mfma_qk(SB, CMB, QB, ks), "qkB1", 1.0))
    for dt in range(4):
        M.append((mfma_p9(dt), "p9", 1.0))
    for ks in range(2):
        for dt in range(4):
            M.append((mfma_pv(OA, SA, ks, dt), "pvA1", 1.0))
    NG = len(M)
    assert NG == 76
    tstart = []
    t = 0.0
    for m in M:
        tstart.append(t)
        t += m[2]
    assert t == 72.0
    gaps = [{"head": [], "body": [], "tail": []} for _ in range(NG)]

    def gap_at(time):
        wrap = int(time // 72)
        tt = time - 72 * wrap
        g = max(i for i in range(NG) if tstart[i] <= tt + 1e-9)
        return g + NG * wrap

    def put(g, sect, fn, tag):
        if g >= NG:
            gaps[g - NG][sect].append(Op(fn, tag + ":prev", sect))
        else:
            gaps[g][sect].append(Op(fn, tag, sect))

    units = []
    def tile_units(tag, S, Lr):
        out = []
        for i in range(16):
            cv = None
            if i % 2 == 1:
                j = i // 2
                cv = (S + 8 * (j // 4) + j % 4, S + i - 1, S + i)
            out.append((tag, S + i, Lr, cv))
        return out
    u9 = []
    for half in range(2):
        for r in range(4):
            cv = None
            if r % 2 == 1:
                cv = (P9 + 2 * half + r // 2, S9 + 4 * half + r - 1, S9 + 4 * half + r)
            u9.append(("sm9", S9 + 4 * half + r, L9A if half == 0 else L9B, cv))
    units = tile_units("smA0", SA, LA) + u9[:4] + tile_units("smB0", SB, LB) + u9[4:] + tile_units("smA1", SA, LA) + tile_units("smB1", SB, LB)
    T_START = 10.0
    for n, (tag, sreg, lreg, cv) in enumerate(units):
        tm = T_START + n
        g = gap_at(tm)
        put(g, "body", lambda u, s=sreg: "v_exp_f32 %s, %s" % (v(s), v(s)), tag)
        g2 = gap_at(tm + 1)
        if M[g2 % NG][2] == 0.5:
            g2 = g2 + 1
        gg = gaps[g2 % NG]
        tag2 = tag + (":prev" if g2 >= NG else "")
        gg.setdefault("body2", []).append(Op(lambda u, s=sreg, l=lreg: "v_add_f32 %s, %s, %s" % (v(l), v(l), v(s)), tag2, "body2"))
        if cv:
            gg["body2"].append(Op(lambda u, c=cv: "v_cvt_pk_bf16_f32 %s, %s, %s" % (v(c[0]), v(c[1]), v(c[2])), tag2, "body2"))
    put(57, "tail", lambda u: "v_permlane16_swap_b32 %s, %s" % (v(P9), v(P9 + 2)), "sm9")
    put(59, "tail", lambda u: "v_permlane16_swap_b32 %s, %s" % (v(P9 + 1), v(P9 + 3)), "sm9")

    def kr(boff, ks):
        return lambda u: "ds_read_b128 %s, %s offset:%d" % (v(KF + 4 * ks, 4), v(AK + ks), ((2 * u + boff) % 8) * 8192)

    def vr(boff, j, jj):
        ks, dt = j // 4, j % 4
        return lambda u: "ds_read_b64_tr_b16 %s, %s offset:%d" % (v(VF + 4 * j + 2 * jj, 2), v(AV + dt), ((2 * u + boff) % 8) * 8192 + (16 * ks + 8 * jj) * 256)

    def k9r(step):
        return lambda u: "ds_read_b128 %s, %s offset:%d" % (v(K9F + 4 * step, 4), v(AK9 + step), ((2 * u) % 8) * 8192)

    def v9r(dt, jj):
        return lambda u: "ds_read_b64_tr_b16 %s, %s offset:%d" % (v(V9F + 4 * dt + 2 * jj, 2), v(AV9 + dt), ((2 * u) % 8) * 8192 + 8 * jj * 256)

    for step in range(4):
        put(4 + step, "head", k9r(step), "k9r")
    def place_v(base, boff, late):
        pos = []
        g = base
        cnt = [1, 2, 1, 2, 1, 2, 1, 2]
        r = 0
        plan = []
        for k in range(8):
            for c in range(cnt[k]):
                if r // 2 <= k:
                    plan.append(base + k)
                    r += 1
        while r < 16:
            plan.append(late.pop(0))
            r += 1
        for r, g in enumerate(plan):
            assert g >= base + r // 2
            put(g, "head", vr(boff, r // 2, r % 2), "vr%d" % boff)
    place_v(8, 0, [24, 25, 26, 27])
    for ks in range(8):
        put(28 + ks, "head", kr(1, ks), "kr1")
    i = 0
    for dt in range(4):
        for jj in range(2):
            put(36 + i, "head", v9r(dt, jj), "v9r")
            i += 1
    place_v(48, 1, [56, 57, 58, 59])
    for ks in range(8):
        put(60 + ks, "head", kr(2, ks), "kr2")

    order = dma_order(opt)
    put(0, "head", lambda u: "s_waitcnt vmcnt(%d)" % barrier_vmcnt(opt), "sync")
    put(0, "head", lambda u: "s_barrier", "sync")

    def dma_group(g, isv, boff, so):
        base = 65536 if isv else 0
        srd = "s[16:19]" if isv else "s[12:15]"
        put(g - 1, "tail", lambda u: "s_add_u32 m0, s30, %d" % (base + ((2 * u + boff) % 8) * 8192), "dma")
        put(g, "head", lambda u: "buffer_load_dwordx4 %s, %s, %s offen%s lds" % (v(DV if isv else DK0), srd, so, opt.nt_kv), "dma")
        put(g + 1, "head", lambda u: "buffer_load_dwordx4 %s, %s, %s offen offset:1024%s lds" % (v(DV if isv else DK1), srd, so, opt.nt_kv), "dma")
    for g, (isv, boff, so) in zip(opt.dma_gaps, order):
        dma_group(g, isv, boff, so)
    for i, so in enumerate(soff_regs(opt)):
        put(72 + i, "tail", lambda u, so=so: "s_add_u32 %s, %s, 16384" % (so, so), "dma")
    return M, gaps


def gap_ops(gp):
    return gp["head"] + gp["body"] + gp.get("body2", []) + gp["tail"]


def linearize(M, gaps, u, waits=None, filt=None):
    out = []
    for g, (mt, tag, sz) in enumerate(M):
        if waits and g in waits:
            out.append(Ins("s_waitcnt lgkmcnt(%d)" % waits[g], gap=g - 1))
        if filt is None or filt(tag):
            out.append(Ins(mt, gap=g, tag=tag))
        for op in gap_ops(gaps[g]):
            if filt is None or filt(op.tag):
                out.append(Ins(op.fn(u), gap=g, tag=op.tag))
    return out


def compute_waits(M, gaps, pos=(0, 16, 32, 40, 64)):
    NG = len(M)
    seq = linearize(M, gaps, 0) + linearize(M, gaps, 1) + linearize(M, gaps, 2) + linearize(M, gaps, 3)
    per = len(seq) // 4
    absg = [ins.meta["gap"] + NG * (i // per) for i, ins in enumerate(seq)]
    waits = {}
    allpos = sorted(p + NG * k for k in range(5) for p in pos)
    for p in pos:
        P0 = p + NG * 2
        nxt = min(x for x in allpos if x > P0)
        i0 = next(i for i, ins in enumerate(seq) if ins.kind == "mfma" and absg[i] == P0)
        reads = [i for i in range(i0) if seq[i].kind == "ldsr"]
        newest = -1
        for i, ins in enumerate(seq):
            if ins.kind == "mfma" and P0 <= absg[i] < nxt:
                touch = set(ins.rd)
                for r in range(i - 1, -1, -1):
                    if seq[r].kind == "ldsr" and set(seq[r].wr) & touch:
                        touch -= set(seq[r].wr)
                        assert r < i0, ("read issued after the wait that must cover it", seq[r].text, ins.text)
                        newest = max(newest, r)
                    if i - r > per:
                        break
        n = sum(1 for r in reads if r > newest)
        assert n <= 15
        waits[p] = n
        if P0 - absg[newest] < 4:
            print("warning: wait at %d covers a read issued only %d gaps earlier" % (p, P0 - absg[newest]))
    return waits


def print_gaps(M, gaps, waits):
    tot = 0
    for g, (mt, tag, sz) in enumerate(M):
        ops = [Ins(o.fn(0)) for o in gap_ops(gaps[g])]
        c = sum(o.cost for o in ops) + (4 if (g + 1) % len(M) in waits else 0)
        cap = 24 if sz == 1.0 else 8
        tot += max(c + 8, cap + 8)
        print("%2d %-8s %2d/%2d %s %s%s" % (g, tag, c, cap, "!!" if c > cap else "  ", " ".join(o.mn.replace("v_", "").replace("_f32", "").replace("buffer_load_dwordx4", "DMA").replace("ds_read_", "") for o in ops),
                                          " +W%d" % waits[(g + 1) % len(M)] if (g + 1) % len(M) in waits else ""))
    print("est cycles/iter", tot)


def max_reduce16(P, S, m, t):
    P("v_max3_f32 %s, %s, %s, %s" % (v(m), v(S), v(S + 1), v(S + 2)))
    for i in range(3, 15, 2):
        P("v_max3_f32 %s, %s, %s, %s" % (v(m), v(m), v(S + i), v(S + i + 1)))
    P("v_max_f32 %s, %s, %s" % (v(m), v(m), v(S + 15)))


def cross32(P, m, t, op):
    P("v_mov_b32 %s, %s" % (v(t), v(m)))
    P("s_nop 1")
    P("v_permlane32_swap_b32 %s, %s" % (v(m), v(t)))
    P("%s %s, %s, %s" % (op, v(m), v(m), v(t)))


def cross16(P, m, t, op):
    P("v_mov_b32 %s, %s" % (v(t), v(m)))
    P("s_nop 1")
    P("v_permlane16_swap_b32 %s, %s" % (v(m), v(t)))
    P("%s %s, %s, %s" % (op, v(m), v(m), v(t)))


def set_cm(P, CM, n, m):
    P("v_xor_b32 %s, 0x80000000, %s" % (v(CM), v(m)))
    for i in range(1, n):
        P("v_mov_b32 %s, %s" % (v(CM + i), v(CM)))


def prescale(P, src, n, dst_a=None):
    for i in range(n):
        t = T0 + 2 * (i % 4)
        P("v_lshlrev_b32 %s, 16, %s" % (v(t), v(src + i)))
        P("v_and_b32 %s, 0xffff0000, %s" % (v(t + 1), v(src + i)))
        P("v_mul_f32 %s, s34, %s" % (v(t), v(t)))
        P("v_mul_f32 %s, s34, %s" % (v(t + 1), v(t + 1)))
        P("v_cvt_pk_bf16_f32 %s, %s, %s" % (v(src + i), v(t), v(t + 1)))
        if dst_a is not None:
            P("v_accvgpr_write_b32 %s, %s" % (a(dst_a + i), v(src + i)))


def dma_pro(P, opt, isv, blk):
    base = 65536 if isv else 0
    srd = "s[16:19]" if isv else "s[12:15]"
    P("s_add_u32 m0, s30, %d" % (base + blk * 8192))
    P("s_mov_b32 s35, %d" % (blk * 8192))
    P("buffer_load_dwordx4 %s, %s, s35 offen%s lds" % (v(DV if isv else DK0), srd, opt.nt_kv))
    P("buffer_load_dwordx4 %s, %s, s35 offen offset:1024%s lds" % (v(DV if isv else DK1), srd, opt.nt_kv))


def zero_state(P):
    for i in range(192):
        P("v_accvgpr_write_b32 %s, 0" % a(i))
    for i in range(32):
        P("v_mov_b32 %s, 0" % v(VF + i))
    for r in (LA, LB, L9A, L9B):
        P("v_mov_b32 %s, 0" % v(r))


def gen(opt, fname, verbose=False):
    M, gaps = build_template(opt)
    waits = compute_waits(M, gaps)
    if verbose:
        print_gaps(M, gaps, waits)
    P = Prog()
    cscale = math.log2(math.e) / math.sqrt(128.0)
    P("""
    s_cmp_ge_u32 s2, 256
    s_cbranch_scc1 L_end
    s_load_dwordx4 s[4:7], s[0:1], 0
    s_load_dwordx4 s[8:11], s[0:1], 16
    s_load_dwordx2 s[58:59], s[0:1], 40
    v_lshrrev_b32 v1, 6, v0
    v_and_b32 v2, 63, v0
    v_and_b32 v3, 31, v0
    v_readfirstlane_b32 s3, v1
    v_lshrrev_b32 v4, 5, v2
    v_and_b32 v5, 15, v0
    v_lshrrev_b32 v6, 4, v2
    """)
    P.stamp(opt, True)
    P.stamp(opt)
    QD = KF
    for j in range(4):
        P("v_add_u32 %s, %d, v6" % (v(T0 + 2), 4 * j))
        P("v_xor_b32 %s, %s, v5" % (v(T0 + 2), v(T0 + 2)))
        P("v_lshlrev_b32 %s, 4, %s" % (v(T0 + 2), v(T0 + 2)))
        P("v_lshl_add_u32 %s, v6, 8, %s" % (v(QD + j), v(T0 + 2)))
    P("v_lshl_add_u32 v7, v1, 3, v6")
    P("v_and_b32 %s, 15, v7" % v(T0 + 2))
    P("v_xor_b32 %s, v5, %s" % (v(T0 + 3), v(T0 + 2)))
    P("v_lshlrev_b32 %s, 4, %s" % (v(T0 + 3), v(T0 + 3)))
    P("v_lshl_add_u32 %s, v7, 8, %s" % (v(DK0), v(T0 + 3)))
    P("v_xor_b32 %s, 64, %s" % (v(DK1), v(DK0)))
    P("v_lshlrev_b32 %s, 2, v6" % v(T0 + 2))
    P("v_xor_b32 %s, v5, %s" % (v(T0 + 3), v(T0 + 2)))
    P("v_lshlrev_b32 %s, 4, %s" % (v(T0 + 3), v(T0 + 3)))
    P("v_lshl_add_u32 %s, v7, 8, %s" % (v(DV), v(T0 + 3)))
    P("""
    s_lshl_b32 s30, s3, 11
    s_mov_b32 s33, 0
    s_mov_b32 s34, 0x%08x
    s_lshl_b32 s28, s2, 19
    s_lshr_b32 s29, s2, 13
    s_mul_i32 s36, s2, 73728
    s_waitcnt lgkmcnt(0)
    s_add_u32 s20, s4, s36
    s_addc_u32 s21, s5, 0
    s_mov_b32 s22, 73728
    s_mov_b32 s23, 0x20000
    s_add_u32 s12, s6, s28
    s_addc_u32 s13, s7, s29
    s_mov_b32 s14, 524288
    s_mov_b32 s15, 0x20000
    s_add_u32 s16, s8, s28
    s_addc_u32 s17, s9, s29
    s_mov_b32 s18, 524288
    s_mov_b32 s19, 0x20000
    s_add_u32 s24, s10, s36
    s_addc_u32 s25, s11, 0
    s_mov_b32 s26, 73728
    s_mov_b32 s27, 0x20000
    s_mov_b32 s37, 8192
    s_mov_b32 s38, 4096
    """ % f32bits(cscale))
    po = pro_order(opt)
    assert po[0] == (False, 0)
    rest = po[1:]
    nneed = max(rest.index(x) for x in [(True, 0), (True, 1), (False, 1), (False, 2)]) + 1
    first, later = rest[:nneed], rest[nneed:]
    vm = []
    def vmwait(tag):
        idx = max(i for i, t in enumerate(vm) if t == tag)
        P("s_waitcnt vmcnt(%d)" % (len(vm) - 1 - idx))
    assert opt.cK <= 5 and opt.cV <= 4
    P("s_lshl_b32 s46, s3, 13")
    P("s_add_u32 s44, s46, %d" % (65536 + 4 * 8192))
    P("s_add_u32 s45, s46, %d" % (5 * 8192))
    P("s_cmp_eq_u32 s3, 3")
    P("s_cselect_b32 s45, %d, s45" % (LDS_X + 8192))
    P("s_lshl_b32 s46, s3, 14")
    def qdma(base, goff, tag):
        for half in range(2):
            P("s_add_u32 m0, %s, %d" % (base, half * 4096))
            P("s_add_u32 s35, s46, %d" % (goff + half * 4096))
            for j in range(4):
                P("buffer_load_dwordx4 %s, s[20:23], s35 offen offset:%d%s lds" % (v(QD + j), j * 1024, opt.nt_q))
                vm.append(tag)
    qdma("s44", 0, "QA")
    dma_pro(P, opt, False, 0)
    vm += ["K0", "K0"]
    if opt.codepf:
        P("s_getpc_b64 s[52:53]")
        P("L_pc:")
        P("s_mov_b32 s54, L_end-L_pc")
        P("s_mov_b32 s55, 0x20000")
        P("v_lshlrev_b32 %s, 7, v0" % v(T0 + 1))
        P("buffer_load_dword %s, %s, s[52:55], 0 offen" % (v(T0 + 8), v(T0 + 1)))
        vm.append("pf")
    init_soff(P, opt)
    for ks in range(8):
        P("v_add_u32 %s, %d, v4" % (v(T0 + 2), 2 * ks))
        P("v_xor_b32 %s, %s, v5" % (v(T0 + 2), v(T0 + 2)))
        P("v_lshlrev_b32 %s, 4, %s" % (v(T0 + 2), v(T0 + 2)))
        P("v_lshl_add_u32 %s, v3, 8, %s" % (v(AK + ks), v(T0 + 2)))
    P("v_lshrrev_b32 %s, 2, v5" % v(T0 + 2))
    P("v_lshl_add_u32 %s, v4, 2, %s" % (v(T0 + 3), v(T0 + 2)))
    P("v_lshlrev_b32 %s, 8, %s" % (v(T0 + 3), v(T0 + 3)))
    P("v_and_b32 %s, 1, v0" % v(T0 + 4))
    P("v_lshl_add_u32 %s, %s, 3, %s" % (v(T0 + 3), v(T0 + 4), v(T0 + 3)))
    P("v_add_u32 %s, 0x10000, %s" % (v(T0 + 3), v(T0 + 3)))
    P("v_and_b32 %s, 1, v6" % v(T0 + 4))
    P("v_lshlrev_b32 %s, 1, %s" % (v(T0 + 4), v(T0 + 4)))
    P("v_bfe_u32 %s, v0, 1, 1" % v(T0 + 5))
    P("v_add_u32 %s, %s, %s" % (v(T0 + 4), v(T0 + 4), v(T0 + 5)))
    for dt in range(4):
        P("v_xor_b32 %s, %d, %s" % (v(T0 + 5), dt, v(T0 + 2)))
        P("v_lshl_add_u32 %s, %s, 2, %s" % (v(T0 + 5), v(T0 + 5), v(T0 + 4)))
        P("v_lshl_add_u32 %s, %s, 4, %s" % (v(AV + dt), v(T0 + 5), v(T0 + 3)))
    P("s_lshl_b32 s39, s3, 12")
    for dt in range(4):
        P("v_add_u32 %s, s39, %s" % (v(AV9 + dt), v(AV + dt)))
    P("v_and_b32 %s, 3, v5" % v(T0 + 2))
    P("v_bfe_u32 %s, v5, 2, 1" % v(T0 + 3))
    P("v_lshl_or_b32 %s, %s, 3, %s" % (v(T0 + 2), v(T0 + 3), v(T0 + 2)))
    P("v_bfe_u32 %s, v5, 3, 1" % v(T0 + 3))
    P("v_lshl_or_b32 %s, %s, 2, %s" % (v(T0 + 2), v(T0 + 3), v(T0 + 2)))
    for step in range(4):
        P("v_add_u32 %s, %d, v6" % (v(T0 + 3), 4 * step))
        P("v_xor_b32 %s, %s, %s" % (v(T0 + 3), v(T0 + 3), v(T0 + 2)))
        P("v_lshlrev_b32 %s, 4, %s" % (v(T0 + 3), v(T0 + 3)))
        P("v_lshl_add_u32 %s, %s, 8, %s" % (v(V9F + step), v(T0 + 2), v(T0 + 3)))
        P("v_add_u32 %s, s39, %s" % (v(AK9 + step), v(V9F + step)))
    for step in range(4):
        P("v_add_u32 %s, %d, v6" % (v(T0 + 3), 4 * step))
        P("v_xor_b32 %s, %s, v5" % (v(T0 + 3), v(T0 + 3)))
        P("v_lshlrev_b32 %s, 4, %s" % (v(T0 + 3), v(T0 + 3)))
        P("v_lshl_add_u32 %s, v5, 8, %s" % (v(T0 + 3), v(T0 + 3)))
        P("v_add_u32 %s, 0x%x, %s" % (v(V9F + 12 + step), LDS_X, v(T0 + 3)))
    P("s_add_u32 m0, s30, %d" % LDS_X)
    P("s_mov_b32 s35, 65536")
    P("buffer_load_dwordx4 %s, s[20:23], s35 offen%s lds" % (v(DK0), opt.nt_q))
    P("buffer_load_dwordx4 %s, s[20:23], s35 offen offset:1024%s lds" % (v(DK1), opt.nt_q))
    vm += ["Q9", "Q9"]
    zero_state(P)
    qdma("s45", 8192, "QB")
    P.stamp(opt)
    QR = S9
    for ks in range(8):
        P("v_add_u32 %s, s44, %s" % (v(QR + ks), v(AK + ks)))
    vmwait("QA")
    P.stamp(opt)
    for ks in range(8):
        P("ds_read_b128 %s, %s" % (v(SA + 4 * ks, 4), v(QR + ks)))
    for ks in range(8):
        P("v_add_u32 %s, s45, %s" % (v(QR + ks), v(AK + ks)))
    for ks in range(8):
        P("s_waitcnt lgkmcnt(%d)" % (7 - ks))
        prescale(P, SA + 4 * ks, 4, QA + 4 * ks)
    for (isv, blk) in first[:2]:
        dma_pro(P, opt, isv, blk)
        vm += ["f", "f"]
    vmwait("Q9")
    P("s_barrier")
    P.stamp(opt)
    for ks in range(8):
        P("ds_read_b128 %s, %s" % (v(KF + 4 * ks, 4), v(AK + ks)))
    for step in range(4):
        P("ds_read_b128 %s, %s" % (v(K9F + 4 * step, 4), v(V9F + step)))
    P("s_waitcnt lgkmcnt(4)")
    for half in range(2):
        for step in range(4):
            P("ds_read_b128 %s, %s offset:%d" % (v(Q9 + 16 * half + 4 * step, 4), v(V9F + 12 + step), half * 4096))
    for ks in range(8):
        P(mfma_qk(SA, CMA, QA, ks, first_c="0"))
    for (isv, blk) in first[2:]:
        dma_pro(P, opt, isv, blk)
        vm += ["f", "f"]
    P("s_waitcnt lgkmcnt(0)")
    prescale(P, Q9, 32)
    vmwait("QB")
    P.stamp(opt)
    for ks in range(8):
        P("ds_read_b128 %s, %s" % (v(CMA + 4 * ks, 4), v(QR + ks)))
    P("s_waitcnt lgkmcnt(0)")
    for half in range(2):
        for step in range(4):
            P(mfma_q9(half, step, first_c="0"))
    nl = len(later) // 2
    for (isv, blk) in later[:nl]:
        dma_pro(P, opt, isv, blk)
    prescale(P, CMA, 32, QB)
    P("s_nop 1")
    for ks in range(8):
        P(mfma_qk(SB, CMB, QB, ks, first_c="0"))
    mA, mB, m9a, m9b, tt = V9F + 4, V9F + 5, V9F + 6, V9F + 7, V9F + 8
    max_reduce16(P, SA, mA, tt)
    for (m, s) in ((m9a, S9), (m9b, S9 + 4)):
        P("v_max3_f32 %s, %s, %s, %s" % (v(m), v(s), v(s + 1), v(s + 2)))
        P("v_max_f32 %s, %s, %s" % (v(m), v(m), v(s + 3)))
    max_reduce16(P, SB, mB, tt)
    for (isv, blk) in later[nl:]:
        dma_pro(P, opt, isv, blk)
    P("L_setmax:")
    cross32(P, mA, tt, "v_max_f32")
    cross32(P, mB, tt, "v_max_f32")
    for m in (m9a, m9b):
        cross16(P, m, tt, "v_max_f32")
        cross32(P, m, tt, "v_max_f32")
    set_cm(P, CMA, 16, mA)
    set_cm(P, CMB, 16, mB)
    set_cm(P, CM9, 4, m9a)
    set_cm(P, CM9 + 4, 4, m9b)
    for i in range(16):
        P("v_mov_b32 %s, 0xf149f2ca" % v(SB + i))
    pre = linearize(M, gaps, 3, None, lambda t: t == "smB1")
    for ins in pre:
        P.L.append(ins)
        P("s_nop 0")
    P("s_nop 1")
    P.stamp(opt)
    if opt.stamps:
        P("s_mov_b32 s47, 0")
    pro_end = len(P.L)
    P(".p2align 6")
    P("L_loop:")
    body = []
    for u in range(4):
        body += linearize(M, gaps, u, waits)
    P.extend(body)
    if opt.stamps:
        P("s_memtime s[56:57]")
        P("s_waitcnt lgkmcnt(0)")
        P("s_mov_b32 m0, s47")
        P("s_nop 0")
        P("s_movreld_b32 s80, s56")
        P("s_add_u32 s47, s47, 1")
    P("s_cmp_lt_u32 s31, %d" % (32 * 16384 + opt.cK * 8192))
    P("s_cbranch_scc1 L_loop")
    loop_end = len(P.L)
    dr = linearize(M, gaps, 0, None, lambda t: t in ("smB1:prev",))
    P("s_nop 7")
    for ins in dr:
        P.L.append(ins)
        P("s_nop 0")
    P("s_nop 1")
    for ks in range(2):
        for dt in range(4):
            P(mfma_pv(OB, SB, ks, dt))
    P.stamp(opt)
    P("s_waitcnt vmcnt(0) lgkmcnt(0)")
    P("s_barrier")
    wa, wb, wl, oa9, chk = T0, T0 + 1, T0 + 2, T0 + 4, T0 + 5
    assert chk % 2 == 0
    tt = KF
    inv = VF
    ST = VF + 8
    GA = VF + 16
    RD = KF + 8
    P("v_lshlrev_b32 %s, 4, v2" % v(wa))
    P("v_lshl_add_u32 %s, v1, 14, %s" % (v(wa), v(wa)))
    P("v_add_u32 %s, 0x10000, %s" % (v(wb), v(wa)))
    for q in range(16):
        P("ds_write_b128 %s, %s offset:%d" % (v(wb), a(O9 + 4 * q, 4), q * 1024))
    for l in (L9A, L9B):
        cross16(P, l, tt, "v_add_f32")
        cross32(P, l, tt, "v_add_f32")
    P("v_and_b32 %s, 16, v0" % v(tt))
    P("v_cmp_eq_u32 vcc, 0, %s" % v(tt))
    P("v_lshlrev_b32 %s, 2, v0" % v(wl))
    P("v_add_u32 %s, 0x%x, %s" % (v(wl), LDS_X, v(wl)))
    P("v_cndmask_b32 %s, %s, %s, vcc" % (v(L9A), v(L9B), v(L9A)))
    P("ds_write_b32 %s, %s" % (v(wl), v(L9A)))
    P("s_lshl_b32 s46, s3, 14")
    for ks in range(8):
        P("v_add_u32 %s, s46, %s" % (v(ST + ks), v(AK + ks)))
    for j in range(4):
        P("v_add_u32 %s, %d, v6" % (v(tt), 4 * j))
        P("v_xor_b32 %s, %s, v5" % (v(tt + 1), v(tt)))
        P("v_lshlrev_b32 %s, 4, %s" % (v(tt + 1), v(tt + 1)))
        P("v_lshl_add_u32 %s, %s, 8, %s" % (v(tt + 1), v(tt), v(tt + 1)))
        P("v_lshl_add_u32 %s, v1, 14, %s" % (v(GA + j), v(tt + 1)))
    P("v_lshlrev_b32 %s, 8, v3" % v(oa9))
    P("v_lshl_add_u32 %s, v4, 4, %s" % (v(oa9), v(oa9)))
    P("v_lshl_add_u32 %s, v1, 6, %s" % (v(oa9), v(oa9)))
    P("v_add_u32 %s, 0x10000, %s" % (v(oa9), v(oa9)))
    P("v_mov_b32 %s, 0" % v(chk))
    P("v_mov_b32 %s, 0" % v(chk + 1))
    P("s_mov_b32 s40, 0x76800000")
    P("s_mov_b32 s47, 12288")

    def out_tile(get, l, ndt, first, sink):
        P("v_cmp_nle_f32 %s, %s, s40" % ("s[42:43]" if first else "vcc", v(l)))
        P("v_rcp_f32 %s, %s" % (v(inv), v(l)))
        if not first:
            P("s_or_b64 s[42:43], s[42:43], vcc")
        else:
            P("s_nop 0")
        P("v_mov_b32 %s, %s" % (v(inv + 1), v(inv)))
        for dt in range(ndt):
            for gp in range(2):
                x = SA + 16 * gp
                src = get(dt * 16 + gp * 8, x)
                for i in range(4):
                    P("v_pk_mul_f32 %s, %s, %s" % (v(x + 2 * i, 2), v(src + 2 * i, 2), v(inv, 2)))
                for i in range(4):
                    P("v_cvt_pk_bf16_f32 %s, %s, %s" % (v(x + 8 + i), v(x + 2 * i), v(x + 2 * i + 1)))
                for i in range(4):
                    P("v_pk_fma_f32 %s, %s, 0, %s" % (v(chk, 2), v(x + 2 * i, 2), v(chk, 2)))
                P("v_permlane32_swap_b32 %s, %s" % (v(x + 8), v(x + 10)))
                P("v_permlane32_swap_b32 %s, %s" % (v(x + 9), v(x + 11)))
                sink(dt, gp, x + 8)

    def get_acc(O):
        def g(base, x):
            for i in range(8):
                P("v_accvgpr_read_b32 %s, %s" % (v(x + i), a(O + base + i)))
            return x
        return g

    def stage(off):
        return lambda dt, gp, x: P("ds_write_b128 %s, %s offset:%d" % (v(ST + 2 * dt + gp), v(x, 4), off))

    def unstage_reads(off, dst):
        for i in range(8):
            P("ds_read_b128 %s, %s offset:%d" % (v(dst + 4 * i, 4), v(wa), off + i * 1024))

    def unstage_stores(tile, dst):
        so = {0: "0", 1: "s38", 2: "s37", 3: "s47"}
        for i in range(8):
            P("buffer_store_dwordx4 %s, %s, s[24:27], %s offen%s" % (v(dst + 4 * i, 4), v(GA + i % 4), so[tile * 2 + i // 4], opt.nt_o))
    cross32(P, LA, tt, "v_add_f32")
    cross32(P, LB, tt, "v_add_f32")
    out_tile(get_acc(OA), LA, 4, True, stage(0))
    P("s_waitcnt lgkmcnt(0)")
    P("s_barrier")
    P.stamp(opt)
    unstage_reads(0, CMA)
    P("v_lshlrev_b32 %s, 4, v2" % v(wb))
    P("v_lshl_add_u32 %s, v1, 12, %s" % (v(wb), v(wb)))
    P("v_add_u32 %s, 0x10000, %s" % (v(wb), v(wb)))
    P("v_lshlrev_b32 %s, 2, v2" % v(wl))
    P("v_add_u32 %s, 0x%x, %s" % (v(wl), LDS_X, v(wl)))
    R9 = [KF, KF + 16, K9F, V9F]
    for ws in range(4):
        P("ds_read_b32 %s, %s offset:%d" % (v(S9 + ws), v(wl), ws * 256))
    P("s_waitcnt lgkmcnt(4)")
    unstage_stores(0, CMA)
    for ws in range(4):
        for q in range(4):
            P("ds_read_b128 %s, %s offset:%d" % (v(R9[ws] + 4 * q, 4), v(wb), ws * 16384 + q * 1024))
        if ws == 1:
            P("s_waitcnt lgkmcnt(6)")
    out_tile(get_acc(OB), LB, 4, False, stage(8192))
    P("s_waitcnt lgkmcnt(0)")
    unstage_reads(8192, CMA)
    for i in range(8):
        P("v_pk_add_f32 %s, %s, %s" % (v(R9[0] + 2 * i, 2), v(R9[0] + 2 * i, 2), v(R9[1] + 2 * i, 2)))
        P("v_pk_add_f32 %s, %s, %s" % (v(R9[2] + 2 * i, 2), v(R9[2] + 2 * i, 2), v(R9[3] + 2 * i, 2)))
    for i in range(8):
        P("v_pk_add_f32 %s, %s, %s" % (v(R9[0] + 2 * i, 2), v(R9[0] + 2 * i, 2), v(R9[2] + 2 * i, 2)))
    P("v_add_f32 %s, %s, %s" % (v(S9), v(S9), v(S9 + 1)))
    P("v_add_f32 %s, %s, %s" % (v(S9 + 2), v(S9 + 2), v(S9 + 3)))
    P("v_add_f32 %s, %s, %s" % (v(S9), v(S9), v(S9 + 2)))
    P("s_waitcnt lgkmcnt(0)")
    unstage_stores(1, CMA)
    out_tile(lambda base, x: R9[0] + base, S9, 1, False,
             lambda dt, gp, x: P("buffer_store_dwordx4 %s, %s, s[24:27], 0 offen offset:%d%s" % (v(x, 4), v(oa9), gp * 32, opt.nt_o)))
    tt = K9F
    P.stamp(opt)
    if opt.stamps:
        P("s_waitcnt vmcnt(0)")
        P.stamp(opt)
        P.stamp(opt, True)
        P("s_mov_b32 s52, s58")
        P("s_mov_b32 s53, s59")
        P("s_mov_b32 s54, 0x100000")
        P("s_mov_b32 s55, 0x20000")
        P("s_lshl_b32 s48, s2, 2")
        P("s_add_u32 s48, s48, s3")
        P("s_lshl_b32 s48, s48, 7")
        P("v_mov_b32 %s, s48" % v(tt))
        for i in range(32):
            P("v_mov_b32 %s, s%d" % (v(tt + 1), 60 + i))
            P("buffer_store_dword %s, %s, s[52:55], 0 offen offset:%d" % (v(tt + 1), v(tt), 4 * i))
            P("s_nop 1")
        P("s_waitcnt vmcnt(0)")
    P("v_cmp_u_f32 vcc, %s, %s" % (v(chk), v(chk + 1)))
    P("s_cmp_lg_u32 s33, 0")
    P("s_cbranch_scc1 L_end")
    P("s_or_b64 s[42:43], s[42:43], vcc")
    P("s_cmp_lg_u64 s[42:43], 0")
    P("s_cselect_b32 s41, 1, 0")
    P("s_lshl_b32 s44, s3, 2")
    P("s_add_u32 s44, s44, %d" % LDS_FLAG)
    P("v_mov_b32 %s, s41" % v(tt))
    P("v_mov_b32 %s, s44" % v(tt + 1))
    P("v_mov_b32 %s, %d" % (v(tt + 2), LDS_FLAG))
    P("ds_write_b32 %s, %s" % (v(tt + 1), v(tt)))
    P("s_waitcnt lgkmcnt(0)")
    P("s_barrier")
    P("ds_read_b128 %s, %s" % (v(tt + 4, 4), v(tt + 2)))
    P("s_waitcnt lgkmcnt(0)")
    P("v_or3_b32 %s, %s, %s, %s" % (v(tt), v(tt + 4), v(tt + 5), v(tt + 6)))
    P("v_or_b32 %s, %s, %s" % (v(tt), v(tt), v(tt + 7)))
    P("s_nop 0")
    P("v_readfirstlane_b32 s41, %s" % v(tt))
    P("s_nop 3")
    P("s_cmp_eq_u32 s41, 0")
    P("s_cbranch_scc1 L_end")
    main_end = len(P.L)
    P("s_mov_b32 s33, 1")
    P("s_waitcnt vmcnt(0)")
    kg, k9g = T0, T0 + 1
    P("v_lshlrev_b32 %s, 8, v3" % v(kg))
    P("v_lshl_add_u32 %s, v4, 4, %s" % (v(kg), v(kg)))
    P("v_lshlrev_b32 %s, 8, v5" % v(k9g))
    P("v_lshl_add_u32 %s, v6, 4, %s" % (v(k9g), v(k9g)))
    for m in (mA, mB, m9a, m9b):
        P("v_mov_b32 %s, 0xff800000" % v(m))
    P("s_mov_b32 s45, 0")
    P("L_maxloop:")
    P("s_add_u32 s46, s45, 4096")
    for ks in range(8):
        P("buffer_load_dwordx4 %s, %s, s[12:15], s45 offen offset:%d" % (v(KF + 4 * ks, 4), v(kg), ks * 32))
    for grp in range(2):
        for step in range(4):
            P("buffer_load_dwordx4 %s, %s, s[12:15], %s offen offset:%d" % (v(VF + 16 * grp + 4 * step, 4), v(k9g), "s46" if grp else "s45", step * 64))
    P("s_waitcnt vmcnt(0)")
    for ks in range(8):
        P(mfma_qk(SA, CMA, QA, ks, first_c="0"))
    for ks in range(8):
        P(mfma_qk(SB, CMB, QB, ks, first_c="0"))
    for grp in range(2):
        for half in range(2):
            for step in range(4):
                P(mfma_q9(half, step, kf=VF + 16 * grp, sreg=CMA + 8 * grp, first_c="0"))
    P("s_nop 7")
    P("s_nop 3")
    for (m, S) in ((mA, SA), (mB, SB)):
        for i in range(0, 16, 2):
            P("v_max3_f32 %s, %s, %s, %s" % (v(m), v(m), v(S + i), v(S + i + 1)))
    for grp in range(2):
        for half, m in ((0, m9a), (1, m9b)):
            s = CMA + 8 * grp + 4 * half
            P("v_max3_f32 %s, %s, %s, %s" % (v(m), v(m), v(s), v(s + 1)))
            P("v_max3_f32 %s, %s, %s, %s" % (v(m), v(m), v(s + 2), v(s + 3)))
    P("s_add_u32 s45, s45, 8192")
    P("s_cmp_lt_u32 s45, 524288")
    P("s_cbranch_scc1 L_maxloop")
    P("s_barrier")
    for (isv, blk) in po:
        dma_pro(P, opt, isv, blk)
    init_soff(P, opt)
    zero_state(P)
    P("s_waitcnt vmcnt(%d)" % (2 * len(po) - 2))
    P("s_barrier")
    for ks in range(8):
        P("ds_read_b128 %s, %s" % (v(KF + 4 * ks, 4), v(AK + ks)))
    P("s_waitcnt lgkmcnt(0)")
    P("s_branch L_setmax")
    P("L_end:")
    P("s_endpgm")

    L = P.L
    lp0 = next(i for i, x in enumerate(L) if x.text == "L_loop:")
    probs = check(L[:loop_end] + L[lp0:main_end], "main")
    sm = next(i for i, x in enumerate(L) if x.text == "L_setmax:")
    ml = next(i for i, x in enumerate(L) if x.text == "L_maxloop:")
    me = next(i for i, x in enumerate(L) if x.text == "s_cbranch_scc1 L_maxloop")
    probs += check(L[main_end - 30:me + 1] + L[ml:-2] + L[sm:lp0 + 200], "fallback")
    if probs:
        print("PROBLEMS:", len(probs))
    hdr = "; @launch grid=(256,1,1) block=(256,1,1) lds=%d\n" % LDS_BYTES
    hdr += '.amdgcn_target "amdgcn-amd-amdhsa--gfx950"\n.text\n.globl %s\n.p2align 8\n.type %s,@function\n%s:\n' % (NAME, NAME, NAME)
    ftr = """.section .rodata,"a"
.p2align 6
.amdhsa_kernel %s
  .amdhsa_next_free_vgpr 512
  .amdhsa_next_free_sgpr 100
  .amdhsa_accum_offset 256
  .amdhsa_group_segment_fixed_size 0
  .amdhsa_kernarg_size 48
  .amdhsa_user_sgpr_count 2
  .amdhsa_user_sgpr_kernarg_segment_ptr 1
  .amdhsa_system_sgpr_workgroup_id_x 1
.end_amdhsa_kernel
""" % NAME
    txt = hdr + "\n".join(("" if x.label else "    ") + x.text for x in L) + "\n" + ftr
    open(fname, "w").write(txt)
    return len(probs)


if __name__ == "__main__":
    o = Opt()
    for kv in sys.argv[2:]:
        k, val = kv.split("=")
        setattr(o, k, eval(val))
    gen(o, sys.argv[1] if len(sys.argv) > 1 else "k1.s", verbose=getattr(o, "verbose", False))
```

```python
import sys, math, struct
from asmir import Ins, check

NAME = "standalone__mha_softmax__near_ridge_kernel"

KF = 8
VF = 40
SA = 72
SB = 88
CMA = 104
CMB = 112
Q9 = 120
S9 = 152
CM9 = 160
P9 = 168
K9F = 172
V9F = 188
AK = 204
AV = 208
AK9 = 216
AV9 = 220
DK0, DK1, DV0, DV1 = 224, 225, 226, 227
LR = 228
L9A, L9B = 232, 233
T0 = 234
OA, OB, O9, QA, QB = 0, 64, 128, 192, 224

LDS_X = 131072
LDS_FLAG = LDS_X + 1024
LDS_BYTES = LDS_X + 16384


def v(n, c=1):
    return "v%d" % n if c == 1 else "v[%d:%d]" % (n, n + c - 1)


def a(n, c=1):
    return "a%d" % n if c == 1 else "a[%d:%d]" % (n, n + c - 1)


def f32bits(x):
    return struct.unpack("<I", struct.pack("<f", x))[0]


class Opt:
    nt_kv = " nt"
    nt_q = " nt"
    nt_o = " nt"
    stamps = False
    dma_gaps = (3, 41, 77, 125)
    codepf = True
    tstart = 6
    verbose = False


class Prog:
    def __init__(self):
        self.L = []
        self.nst = 0

    def stamp(self, opt, real=False):
        if not opt.stamps:
            return
        self("s_waitcnt lgkmcnt(0)")
        self("%s s[56:57]" % ("s_memrealtime" if real else "s_memtime"))
        self("s_waitcnt lgkmcnt(0)")
        self("s_mov_b32 s%d, s56" % (60 + self.nst))
        self.nst += 1

    def __call__(self, text, **meta):
        for t in text.strip().split("\n"):
            t = t.strip()
            if t:
                self.L.append(Ins(t, **meta))

    def extend(self, lst):
        self.L.extend(lst)


M16 = "v_mfma_f32_16x16x32_bf16"


def qk_group(S, CM, Q, first_c=None, kf=KF):
    out = []
    for qt in range(2):
        for kt in range(2):
            d = S + 8 * qt + 4 * kt
            for st in range(4):
                c = (v(CM + 4 * qt, 4) if first_c is None else first_c) if st == 0 else v(d, 4)
                out.append("%s %s, %s, %s, %s" % (M16, v(d, 4), v(kf + 4 * (kt * 4 + st), 4), a(Q + 4 * (qt * 4 + st), 4), c))
    return out


def pv_group(O, S):
    out = []
    for qt in range(2):
        for dt in range(8):
            o = a(O + 4 * (qt * 8 + dt), 4)
            out.append("%s %s, %s, %s, %s" % (M16, o, v(VF + 4 * dt, 4), v(S + 8 * qt, 4), o))
    return out


def mfma_q9(half, step, kf=K9F, sreg=S9, first_c=None):
    c = (v(CM9 + 4 * half, 4) if first_c is None else first_c) if step == 0 else v(sreg + 4 * half, 4)
    return "%s %s, %s, %s, %s" % (M16, v(sreg + 4 * half, 4), v(kf + 4 * step, 4), v(Q9 + 16 * half + 4 * step, 4), c)


def mfma_p9(dt):
    return "v_mfma_f32_32x32x16_bf16 %s, %s, %s, %s" % (a(O9 + 16 * dt, 16), v(V9F + 4 * dt, 4), v(P9, 4), a(O9 + 16 * dt, 16))


class Op:
    def __init__(self, fn, tag, cost=4):
        self.fn, self.tag, self.cost = fn, tag, cost


DMA_ORDER = [(True, 4, "s31"), (False, 5, "s32"), (True, 5, "s32"), (False, 6, "s31")]
PRO_ORDER = [(False, 0), (True, 0), (False, 1), (True, 1), (False, 2), (True, 2), (False, 3), (True, 3), (False, 4)]
BAR_VMCNT = 8
WAITPOS = (0, 32, 56, 72, 120)


def init_soff(P):
    P("s_mov_b32 s31, %d" % (4 * 8192))
    P("s_mov_b32 s32, %d" % (5 * 8192))


def build_template(opt):
    M = []
    def add(lst, tag, sz=0.5):
        for t in lst:
            M.append((t, tag, sz))
    add(qk_group(SA, CMA, QA), "qkA0")
    add(pv_group(OB, SB), "pvBprev")
    add([mfma_q9(h, s) for h in range(2) for s in range(4)], "q9")
    add(qk_group(SB, CMB, QB), "qkB0")
    add(pv_group(OA, SA), "pvA0")
    add(qk_group(SA, CMA, QA), "qkA1")
    add(pv_group(OB, SB), "pvB0")
    add(qk_group(SB, CMB, QB), "qkB1")
    add([mfma_p9(dt) for dt in range(4)], "p9", 1.0)
    add(pv_group(OA, SA), "pvA1")
    NG = len(M)
    assert NG == 140
    tstart = []
    t = 0.0
    for m in M:
        tstart.append(t)
        t += m[2]
    assert t == 72.0
    gaps = [{"head": [], "body": [], "body2": [], "tail": []} for _ in range(NG)]
    cap = [8 if m[2] == 0.5 else 24 for m in M]
    load = [0] * NG

    def gap_at(time):
        wrap = int(time // 72)
        tt = time - 72 * wrap
        g = max(i for i in range(NG) if tstart[i] <= tt + 1e-9)
        return g + NG * wrap

    def put(g, sect, fn, tag, cost=4):
        if g >= NG:
            tag = tag + ":prev"
        gaps[g % NG][sect].append(Op(fn, tag, cost))
        load[g % NG] += cost

    def tile_units(tag, S, Lr):
        out = []
        for i in range(16):
            cv = None
            if i % 2 == 1:
                j = i // 2
                cv = (S + 8 * (j // 4) + j % 4, S + i - 1, S + i)
            out.append((tag, S + i, Lr + i // 8, cv))
        return out
    u9 = []
    for half in range(2):
        for r in range(4):
            cv = None
            if r % 2 == 1:
                cv = (P9 + 2 * half + r // 2, S9 + 4 * half + r - 1, S9 + 4 * half + r)
            u9.append(("sm9", S9 + 4 * half + r, L9A + half, cv))
    units = tile_units("smA0", SA, LR) + u9[:4] + tile_units("smB0", SB, LR + 2) + u9[4:] + tile_units("smA1", SA, LR) + tile_units("smB1", SB, LR + 2)
    for n, (tag, sreg, lreg, cv) in enumerate(units):
        tm = opt.tstart + n
        g = gap_at(tm)
        put(g, "body", lambda u, s=sreg: "v_exp_f32 %s, %s" % (v(s), v(s)), tag, 8)
        g2 = gap_at(tm + 1)
        if M[g2 % NG][2] == 0.5:
            g2 = g2 + 1
        put(g2, "body2", lambda u, s=sreg, l=lreg: "v_add_f32 %s, %s, %s" % (v(l), v(l), v(s)), tag)
        if cv:
            put(g2, "body2", lambda u, c=cv: "v_cvt_pk_bf16_f32 %s, %s, %s" % (v(c[0]), v(c[1]), v(c[2])), tag)

    put(0, "head", lambda u: "s_waitcnt vmcnt(%d)" % BAR_VMCNT, "sync")
    put(0, "head", lambda u: "s_barrier", "sync")
    for p in WAITPOS:
        load[(p - 1) % NG] += 4

    def place(e, l, sect, fn, tag, after=None):
        best = None
        for g in range(e, l + 1):
            over = max(0, load[g % NG] + 4 - cap[g % NG])
            key = (over, g)
            if best is None or key < best:
                best = key
        put(best[1], sect, fn, tag)
        return best[1]

    def spread(items, e_list, l, tag):
        n = len(items)
        s0 = e_list[0]
        step = (l + 1 - s0) / n
        prev = s0 - 1
        for i, fn in enumerate(items):
            e = max(e_list[i], prev + 1, s0 + int(i * step))
            hi = max(e, min(l - (n - 1 - i), s0 + int((i + 1) * step) - 1))
            assert e <= l, (tag, i, e, l)
            prev = place(e, hi, "head", fn, tag)

    def kr(boff, j):
        kt, st = j // 4, j % 4
        return lambda u: "ds_read_b128 %s, %s offset:%d" % (v(KF + 4 * j, 4), v(AK + st), ((2 * u + boff) % 8) * 8192 + kt * 4096)

    def vr(boff, dt, jj):
        return lambda u: "ds_read_b64_tr_b16 %s, %s offset:%d" % (v(VF + 4 * dt + 2 * jj, 2), v(AV + dt), ((2 * u + boff) % 8) * 8192 + jj * 4096)

    def k9r(step):
        return lambda u: "ds_read_b128 %s, %s offset:%d" % (v(K9F + 4 * step, 4), v(AK9 + step), ((2 * u) % 8) * 8192)

    def v9r(dt, jj):
        return lambda u: "ds_read_b64_tr_b16 %s, %s offset:%d" % (v(V9F + 4 * dt + 2 * jj, 2), v(AV9 + dt), ((2 * u) % 8) * 8192 + 8 * jj * 256)

    for gi, (g, (isv, boff, so)) in enumerate(zip(opt.dma_gaps, DMA_ORDER)):
        base = 65536 if isv else 0
        srd = "s[16:19]" if isv else "s[12:15]"
        d0, d1 = (DV0, DV1) if isv else (DK0, DK1)
        g0 = place(g - 2, g - 1, "tail", lambda u, base=base, boff=boff: "s_add_u32 m0, s30, %d" % (base + ((2 * u + boff) % 8) * 8192), "dma")
        g1 = place(g0 + 1, g0 + 3, "head", lambda u, d0=d0, srd=srd, so=so: "buffer_load_dwordx4 %s, %s, %s offen%s lds" % (v(d0), srd, so, opt.nt_kv), "dma")
        g2 = place(g1 + 1, g1 + 3, "head", lambda u, d1=d1, srd=srd, so=so: "buffer_load_dwordx4 %s, %s, %s offen offset:1024%s lds" % (v(d1), srd, so, opt.nt_kv), "dma")
        if gi == 0:
            place(g2 + 1, g2 + 8, "tail", lambda u: "s_add_u32 s31, s31, 16384", "dma")
        if gi == 2:
            place(g2 + 1, g2 + 8, "tail", lambda u: "s_add_u32 s32, s32, 16384", "dma")
    g9 = gap_at(opt.tstart + 44 + 2)
    ga = place(g9, g9 + 6, "tail", lambda u: "v_permlane16_swap_b32 %s, %s" % (v(P9), v(P9 + 2)), "sm9")
    place(ga + 1, ga + 6, "tail", lambda u: "v_permlane16_swap_b32 %s, %s" % (v(P9 + 1), v(P9 + 3)), "sm9")

    spread([k9r(s) for s in range(4)], [8] * 4, 24, "k9r")
    spread([vr(0, r // 2, r % 2) for r in range(16)], [24 + r // 2 for r in range(16)], 48, "vr0")
    spread([kr(1, j) for j in range(8)], [49 + j for j in range(8)], 64, "kr1")
    spread([v9r(r // 2, r % 2) for r in range(8)], [66] * 8, 95, "v9r")
    spread([vr(1, r // 2, r % 2) for r in range(16)], [96 + r // 2 for r in range(16)], 113, "vr1")
    spread([kr(2, j) for j in range(8)], [114 + j for j in range(8)], 132, "kr2")
    return M, gaps


def gap_ops(gp):
    return gp["head"] + gp["body"] + gp["body2"] + gp["tail"]


def linearize(M, gaps, u, waits=None, filt=None):
    out = []
    for g, (mt, tag, sz) in enumerate(M):
        if waits and g in waits:
            out.append(Ins("s_waitcnt lgkmcnt(%d)" % waits[g], gap=g - 1))
        if filt is None or filt(tag):
            out.append(Ins(mt, gap=g, tag=tag))
        for op in gap_ops(gaps[g]):
            if filt is None or filt(op.tag):
                out.append(Ins(op.fn(u), gap=g, tag=op.tag))
    return out


def compute_waits(M, gaps, pos=WAITPOS):
    NG = len(M)
    seq = linearize(M, gaps, 0) + linearize(M, gaps, 1) + linearize(M, gaps, 2) + linearize(M, gaps, 3)
    per = len(seq) // 4
    absg = [ins.meta["gap"] + NG * (i // per) for i, ins in enumerate(seq)]
    waits = {}
    allpos = sorted(p + NG * k for k in range(5) for p in pos)
    for p in pos:
        P0 = p + NG * 2
        nxt = min(x for x in allpos if x > P0)
        i0 = next(i for i, ins in enumerate(seq) if ins.kind == "mfma" and absg[i] == P0)
        reads = [i for i in range(i0) if seq[i].kind == "ldsr"]
        newest = -1
        for i, ins in enumerate(seq):
            if ins.kind == "mfma" and P0 <= absg[i] < nxt:
                touch = set(ins.rd)
                for r in range(i - 1, -1, -1):
                    if seq[r].kind == "ldsr" and set(seq[r].wr) & touch:
                        touch -= set(seq[r].wr)
                        assert r < i0, ("read issued after the wait that must cover it", seq[r].text, ins.text)
                        newest = max(newest, r)
                    if i - r > per:
                        break
        n = sum(1 for r in reads if r > newest)
        assert n <= 15
        waits[p] = n
        if P0 - absg[newest] < 7:
            print("warning: wait at %d covers a read issued only %d gaps earlier" % (p, P0 - absg[newest]))
    return waits


def print_gaps(M, gaps, waits, verbose):
    tot = 0
    for g, (mt, tag, sz) in enumerate(M):
        ops = [Ins(o.fn(0)) for o in gap_ops(gaps[g])]
        c = sum(o.cost for o in ops) + (4 if (g + 1) % len(M) in waits else 0)
        cap = 24 if sz == 1.0 else 8
        tot += max(c + 8, cap + 8)
        if verbose:
            print("%3d %-8s %2d/%2d %s %s%s" % (g, tag, c, cap, "!!" if c > cap + 4 else ("! " if c > cap else "  "),
                                             " ".join(o.mn.replace("v_", "").replace("_f32", "").replace("buffer_load_dwordx4", "DMA").replace("ds_read_", "") for o in ops),
                                             " +W%d" % waits[(g + 1) % len(M)] if (g + 1) % len(M) in waits else ""))
    print("est cycles/iter", tot)


def cross(P, m, t, op, which):
    P("v_mov_b32 %s, %s" % (v(t), v(m)))
    P("s_nop 1")
    P("v_permlane%d_swap_b32 %s, %s" % (which, v(m), v(t)))
    P("%s %s, %s, %s" % (op, v(m), v(m), v(t)))


def cross_all(P, regs, tmps, op):
    for which in (16, 32):
        for m, t in zip(regs, tmps):
            P("v_mov_b32 %s, %s" % (v(t), v(m)))
        if len(regs) < 3:
            P("s_nop 1")
        for m, t in zip(regs, tmps):
            P("v_permlane%d_swap_b32 %s, %s" % (which, v(m), v(t)))
        for m, t in zip(regs, tmps):
            P("%s %s, %s, %s" % (op, v(m), v(m), v(t)))


def prescale(P, src, n, dst_a=None):
    for i in range(n):
        t = T0 + 2 * (i % 4)
        P("v_lshlrev_b32 %s, 16, %s" % (v(t), v(src + i)))
        P("v_and_b32 %s, 0xffff0000, %s" % (v(t + 1), v(src + i)))
        P("v_mul_f32 %s, s34, %s" % (v(t), v(t)))
        P("v_mul_f32 %s, s34, %s" % (v(t + 1), v(t + 1)))
        P("v_cvt_pk_bf16_f32 %s, %s, %s" % (v(src + i), v(t), v(t + 1)))
        if dst_a is not None:
            P("v_accvgpr_write_b32 %s, %s" % (a(dst_a + i), v(src + i)))


def dma_pro(P, opt, isv, blk):
    base = 65536 if isv else 0
    srd = "s[16:19]" if isv else "s[12:15]"
    P("s_add_u32 m0, s30, %d" % (base + blk * 8192))
    P("s_mov_b32 s35, %d" % (blk * 8192))
    P("buffer_load_dwordx4 %s, %s, s35 offen%s lds" % (v(DV0 if isv else DK0), srd, opt.nt_kv))
    P("buffer_load_dwordx4 %s, %s, s35 offen offset:1024%s lds" % (v(DV1 if isv else DK1), srd, opt.nt_kv))


def zero_state(P):
    for i in range(192):
        P("v_accvgpr_write_b32 %s, 0" % a(i))
    for i in range(32):
        P("v_mov_b32 %s, 0" % v(VF + i))
    for r in range(LR, LR + 6):
        P("v_mov_b32 %s, 0" % v(r))


def gen(opt, fname):
    M, gaps = build_template(opt)
    waits = compute_waits(M, gaps)
    print_gaps(M, gaps, waits, opt.verbose)
    P = Prog()
    cscale = math.log2(math.e) / math.sqrt(128.0)
    P("""
    s_cmp_ge_u32 s2, 256
    s_cbranch_scc1 L_end
    s_load_dwordx4 s[4:7], s[0:1], 0
    s_load_dwordx4 s[8:11], s[0:1], 16
    s_load_dwordx2 s[58:59], s[0:1], 40
    v_lshrrev_b32 v1, 6, v0
    v_and_b32 v2, 63, v0
    v_and_b32 v3, 31, v0
    v_readfirstlane_b32 s3, v1
    v_lshrrev_b32 v4, 5, v2
    v_and_b32 v5, 15, v0
    v_lshrrev_b32 v6, 4, v2
    """)
    P.stamp(opt, True)
    P.stamp(opt)
    t = T0
    QD = KF
    for j in range(4):
        P("v_add_u32 %s, %d, v6" % (v(t), 4 * j))
        P("v_xor_b32 %s, %s, v5" % (v(t), v(t)))
        P("v_lshlrev_b32 %s, 4, %s" % (v(t), v(t)))
        P("v_lshl_add_u32 %s, v6, 8, %s" % (v(QD + j), v(t)))
    P("v_lshl_add_u32 v7, v1, 3, v6")
    P("v_and_b32 %s, 15, v7" % v(t))
    P("v_xor_b32 %s, v5, %s" % (v(t), v(t)))
    P("v_lshlrev_b32 %s, 4, %s" % (v(t), v(t)))
    P("v_lshl_add_u32 %s, v7, 8, %s" % (v(DK0), v(t)))
    P("v_xor_b32 %s, 64, %s" % (v(DK1), v(DK0)))
    P("v_lshlrev_b32 %s, 2, v6" % v(t))
    P("v_xor_b32 %s, v5, %s" % (v(t), v(t)))
    P("v_lshlrev_b32 %s, 4, %s" % (v(t), v(t)))
    P("v_lshl_add_u32 %s, v7, 8, %s" % (v(DV0), v(t)))
    P("v_xor_b32 %s, 32, %s" % (v(DV1), v(DV0)))
    P("""
    s_lshl_b32 s30, s3, 11
    s_mov_b32 s33, 0
    s_mov_b32 s34, 0x%08x
    s_lshl_b32 s28, s2, 19
    s_lshr_b32 s29, s2, 13
    s_mul_i32 s36, s2, 73728
    s_lshl_b32 s46, s3, 13
    s_add_u32 s44, s46, %d
    s_add_u32 s45, s46, %d
    s_cmp_eq_u32 s3, 3
    s_cselect_b32 s45, %d, s45
    s_lshl_b32 s46, s3, 14
    s_waitcnt lgkmcnt(0)
    s_add_u32 s20, s4, s36
    s_addc_u32 s21, s5, 0
    s_mov_b32 s22, 73728
    s_mov_b32 s23, 0x20000
    s_add_u32 s12, s6, s28
    s_addc_u32 s13, s7, s29
    s_mov_b32 s14, 524288
    s_mov_b32 s15, 0x20000
    """ % (f32bits(cscale), 65536 + 4 * 8192, 5 * 8192, LDS_X + 8192))
    vm = []

    def vmwait(tag):
        idx = max(i for i, x in enumerate(vm) if x == tag)
        P("s_waitcnt vmcnt(%d)" % (len(vm) - 1 - idx))

    def qdma(base, goff, tag):
        for half in range(2):
            P("s_add_u32 m0, %s, %d" % (base, half * 4096))
            P("s_add_u32 s35, s46, %d" % (goff + half * 4096))
            for j in range(4):
                P("buffer_load_dwordx4 %s, s[20:23], s35 offen offset:%d%s lds" % (v(QD + j), j * 1024, opt.nt_q))
                vm.append(tag)

    def kv(isv, blk):
        dma_pro(P, opt, isv, blk)
        vm.extend(["%s%d" % ("V" if isv else "K", blk)] * 2)
    qdma("s44", 0, "QA")
    kv(False, 0)
    if opt.codepf:
        P("s_getpc_b64 s[52:53]")
        P("L_pc:")
        P("s_mov_b32 s54, L_end-L_pc")
        P("s_mov_b32 s55, 0x20000")
        P("v_lshlrev_b32 %s, 7, v0" % v(T0 + 20))
        P("buffer_load_dword %s, %s, s[52:55], 0 offen" % (v(T0 + 21), v(T0 + 20)))
        vm.append("pf")
    P("""
    s_add_u32 s16, s8, s28
    s_addc_u32 s17, s9, s29
    s_mov_b32 s18, 524288
    s_mov_b32 s19, 0x20000
    s_add_u32 s24, s10, s36
    s_addc_u32 s25, s11, 0
    s_mov_b32 s26, 73728
    s_mov_b32 s27, 0x20000
    s_mov_b32 s37, 8192
    s_mov_b32 s38, 4096
    """)
    init_soff(P)
    for st in range(4):
        P("v_add_u32 %s, %d, v6" % (v(t), 4 * st))
        P("v_xor_b32 %s, %s, v5" % (v(t), v(t)))
        P("v_lshlrev_b32 %s, 4, %s" % (v(t), v(t)))
        P("v_lshl_add_u32 %s, v5, 8, %s" % (v(AK + st), v(t)))
    P("v_lshrrev_b32 %s, 2, v5" % v(t))
    P("v_lshl_add_u32 %s, v6, 2, %s" % (v(t + 1), v(t)))
    P("v_lshlrev_b32 %s, 8, %s" % (v(t + 1), v(t + 1)))
    P("v_and_b32 %s, 1, v0" % v(t + 2))
    P("v_lshl_add_u32 %s, %s, 3, %s" % (v(t + 1), v(t + 2), v(t + 1)))
    P("v_bfe_u32 %s, v0, 1, 1" % v(t + 3))
    P("v_lshl_add_u32 %s, %s, 4, %s" % (v(t + 1), v(t + 3), v(t + 1)))
    P("v_add_u32 %s, 0x10000, %s" % (v(t + 1), v(t + 1)))
    P("v_and_b32 %s, 1, v6" % v(t + 4))
    P("v_lshl_or_b32 %s, %s, 1, %s" % (v(t + 5), v(t), v(t + 4)))
    for dt in range(8):
        P("v_xor_b32 %s, %d, %s" % (v(t + 6), dt, v(t + 5)))
        P("v_lshl_add_u32 %s, %s, 5, %s" % (v(AV + dt), v(t + 6), v(t + 1)))
    P("s_lshl_b32 s39, s3, 12")
    P("v_lshl_add_u32 %s, v4, 2, %s" % (v(t + 1), v(t)))
    P("v_lshlrev_b32 %s, 8, %s" % (v(t + 1), v(t + 1)))
    P("v_lshl_add_u32 %s, %s, 3, %s" % (v(t + 1), v(t + 2), v(t + 1)))
    P("v_lshl_add_u32 %s, %s, 4, %s" % (v(t + 1), v(t + 3), v(t + 1)))
    P("v_add_u32 %s, 0x10000, %s" % (v(t + 1), v(t + 1)))
    P("v_add_u32 %s, s39, %s" % (v(t + 1), v(t + 1)))
    P("v_lshl_or_b32 %s, %s, 1, v4" % (v(t + 5), v(t)))
    P("v_xor_b32 %s, %s, %s" % (v(t + 5), v(t + 5), v(t + 4)))
    for dt in range(4):
        P("v_xor_b32 %s, %d, %s" % (v(t + 6), 2 * dt, v(t + 5)))
        P("v_lshl_add_u32 %s, %s, 5, %s" % (v(AV9 + dt), v(t + 6), v(t + 1)))
    P("v_and_b32 %s, 3, v5" % v(t))
    P("v_bfe_u32 %s, v5, 2, 1" % v(t + 1))
    P("v_lshl_or_b32 %s, %s, 3, %s" % (v(t), v(t + 1), v(t)))
    P("v_bfe_u32 %s, v5, 3, 1" % v(t + 1))
    P("v_lshl_or_b32 %s, %s, 2, %s" % (v(t), v(t + 1), v(t)))
    for step in range(4):
        P("v_add_u32 %s, %d, v6" % (v(t + 1), 4 * step))
        P("v_xor_b32 %s, %s, %s" % (v(t + 1), v(t + 1), v(t)))
        P("v_lshlrev_b32 %s, 4, %s" % (v(t + 1), v(t + 1)))
        P("v_lshl_add_u32 %s, %s, 8, %s" % (v(t + 1), v(t), v(t + 1)))
        P("v_add_u32 %s, s39, %s" % (v(AK9 + step), v(t + 1)))
    P("s_add_u32 m0, s30, %d" % LDS_X)
    P("s_mov_b32 s35, 65536")
    P("buffer_load_dwordx4 %s, s[20:23], s35 offen%s lds" % (v(DK0), opt.nt_q))
    P("buffer_load_dwordx4 %s, s[20:23], s35 offen offset:1024%s lds" % (v(DK1), opt.nt_q))
    vm += ["Q9", "Q9"]
    zero_state(P)
    qdma("s45", 8192, "QB")
    P.stamp(opt)
    QR = V9F
    for st in range(4):
        P("v_add_u32 %s, s44, %s" % (v(QR + st), v(AK + st)))
        P("v_add_u32 %s, s45, %s" % (v(QR + 4 + st), v(AK + st)))
        P("v_add_u32 %s, 0x%x, %s" % (v(QR + 8 + st), LDS_X, v(AK + st)))
    vmwait("QA")
    P.stamp(opt)
    for j in range(8):
        P("ds_read_b128 %s, %s offset:%d" % (v(SA + 4 * j, 4), v(QR + j % 4), (j // 4) * 4096))
    for j in range(8):
        P("s_waitcnt lgkmcnt(%d)" % (7 - j))
        prescale(P, SA + 4 * j, 4, QA + 4 * j)
    kv(True, 0)
    kv(False, 1)
    vmwait("Q9")
    P("s_barrier")
    P.stamp(opt)
    for j in range(8):
        P("ds_read_b128 %s, %s offset:%d" % (v(KF + 4 * j, 4), v(AK + j % 4), (j // 4) * 4096))
    for j in range(8):
        P("ds_read_b128 %s, %s offset:%d" % (v(Q9 + 4 * j, 4), v(QR + 8 + j % 4), (j // 4) * 4096))
        if j == 5:
            P("s_waitcnt lgkmcnt(6)")
    for m in qk_group(SA, CMA, QA, first_c="0"):
        P(m)
    kv(True, 1)
    kv(False, 2)
    P("s_waitcnt lgkmcnt(0)")
    prescale(P, Q9, 32)
    vmwait("QB")
    P.stamp(opt)
    QBR = K9F - 16 if False else None
    for j in range(8):
        dst = SB + 4 * j if j < 4 else K9F + 4 * (j - 4)
        P("ds_read_b128 %s, %s offset:%d" % (v(dst, 4), v(QR + 4 + j % 4), (j // 4) * 4096))
    for half in range(2):
        for step in range(4):
            P(mfma_q9(half, step, kf=KF, first_c="0"))
    kv(True, 2)
    kv(False, 3)
    P("s_waitcnt lgkmcnt(0)")
    prescale(P, SB, 16, QB)
    prescale(P, K9F, 16, QB + 16)
    P("s_nop 1")
    for m in qk_group(SB, CMB, QB, first_c="0"):
        P(m)
    MX = V9F
    def max8(m, s):
        P("v_max3_f32 %s, %s, %s, %s" % (v(m), v(s), v(s + 1), v(s + 2)))
        P("v_max3_f32 %s, %s, %s, %s" % (v(m), v(m), v(s + 3), v(s + 4)))
        P("v_max3_f32 %s, %s, %s, %s" % (v(m), v(m), v(s + 5), v(s + 6)))
        P("v_max_f32 %s, %s, %s" % (v(m), v(m), v(s + 7)))
    max8(MX, SA)
    max8(MX + 1, SA + 8)
    for (m, s) in ((MX + 4, S9), (MX + 5, S9 + 4)):
        P("v_max3_f32 %s, %s, %s, %s" % (v(m), v(s), v(s + 1), v(s + 2)))
        P("v_max_f32 %s, %s, %s" % (v(m), v(m), v(s + 3)))
    kv(True, 3)
    kv(False, 4)
    max8(MX + 2, SB)
    max8(MX + 3, SB + 8)
    P("L_setmax:")
    cross_all(P, [MX + i for i in range(6)], [MX + 8 + i for i in range(6)], "v_max_f32")
    for i, cm in enumerate((CMA, CMA + 4, CMB, CMB + 4, CM9, CM9 + 4)):
        P("v_xor_b32 %s, 0x80000000, %s" % (v(cm), v(MX + i)))
        for k in range(1, 4):
            P("v_xor_b32 %s, 0x80000000, %s" % (v(cm + k), v(MX + i)))
    for i in range(16):
        P("v_mov_b32 %s, 0xf149f2ca" % v(SB + i))
    pre = linearize(M, gaps, 3, None, lambda x: x == "smB1")
    for ins in pre:
        P.L.append(ins)
        if ins.kind == "trans":
            P("s_nop 0")
    P("s_nop 1")
    P.stamp(opt)
    if opt.stamps:
        P("s_mov_b32 s47, 0")
    P(".p2align 6")
    P("L_loop:")
    body = []
    for u in range(4):
        body += linearize(M, gaps, u, waits)
    P.extend(body)
    if opt.stamps:
        P("s_memtime s[56:57]")
        P("s_waitcnt lgkmcnt(0)")
        P("s_mov_b32 m0, s47")
        P("s_nop 0")
        P("s_movreld_b32 s80, s56")
        P("s_add_u32 s47, s47, 1")
    P("s_cmp_lt_u32 s31, %d" % (32 * 16384 + 4 * 8192))
    P("s_cbranch_scc1 L_loop")
    loop_end = len(P.L)
    dr = linearize(M, gaps, 0, None, lambda x: x in ("smB1:prev",))
    for ins in dr:
        P.L.append(ins)
        if ins.kind == "trans":
            P("s_nop 0")
    P("s_nop 1")
    for m in pv_group(OB, SB):
        P(m)
    P.stamp(opt)
    P("s_waitcnt vmcnt(0) lgkmcnt(0)")
    P("s_barrier")
    wa, wb, wl, oa9, chk = T0, T0 + 1, T0 + 2, T0 + 3, T0 + 4
    assert chk % 2 == 0
    inv = T0 + 6
    ST = T0 + 8
    GA = T0 + 12
    tt = T0 + 16
    P("v_lshlrev_b32 %s, 4, v2" % v(wa))
    P("v_lshl_add_u32 %s, v1, 14, %s" % (v(wa), v(wa)))
    P("v_add_u32 %s, 0x10000, %s" % (v(wb), v(wa)))
    for q in range(16):
        P("ds_write_b128 %s, %s offset:%d" % (v(wb), a(O9 + 4 * q, 4), q * 1024))
    cross_all(P, [LR + i for i in range(6)], [tt + i for i in range(6)], "v_add_f32")
    P("v_and_b32 %s, 16, v0" % v(tt))
    P("v_cmp_eq_u32 vcc, 0, %s" % v(tt))
    P("v_lshlrev_b32 %s, 2, v0" % v(wl))
    P("v_add_u32 %s, 0x%x, %s" % (v(wl), LDS_X, v(wl)))
    P("v_cndmask_b32 %s, %s, %s, vcc" % (v(L9A), v(L9B), v(L9A)))
    P("ds_write_b32 %s, %s" % (v(wl), v(L9A)))
    P("v_and_b32 %s, 1, v6" % v(tt))
    P("v_lshl_or_b32 %s, %s, 1, v4" % (v(tt), v(tt)))
    P("v_lshlrev_b32 %s, 8, v5" % v(tt + 1))
    P("v_lshl_add_u32 %s, v1, 14, %s" % (v(tt + 1), v(tt + 1)))
    for k in range(4):
        P("v_add_u32 %s, %d, %s" % (v(tt + 2), 4 * k, v(tt)))
        P("v_xor_b32 %s, %s, v5" % (v(tt + 2), v(tt + 2)))
        P("v_lshl_add_u32 %s, %s, 4, %s" % (v(ST + k), v(tt + 2), v(tt + 1)))
    for j in range(4):
        P("v_add_u32 %s, %d, v6" % (v(tt), 4 * j))
        P("v_xor_b32 %s, %s, v5" % (v(tt + 1), v(tt)))
        P("v_lshlrev_b32 %s, 4, %s" % (v(tt + 1), v(tt + 1)))
        P("v_lshl_add_u32 %s, %s, 8, %s" % (v(tt + 1), v(tt), v(tt + 1)))
        P("v_lshl_add_u32 %s, v1, 14, %s" % (v(GA + j), v(tt + 1)))
    P("v_lshlrev_b32 %s, 8, v3" % v(oa9))
    P("v_lshl_add_u32 %s, v4, 4, %s" % (v(oa9), v(oa9)))
    P("v_lshl_add_u32 %s, v1, 6, %s" % (v(oa9), v(oa9)))
    P("v_add_u32 %s, 0x10000, %s" % (v(oa9), v(oa9)))
    P("v_mov_b32 %s, 0" % v(chk))
    P("v_mov_b32 %s, 0" % v(chk + 1))
    P("s_mov_b32 s40, 0x76800000")
    P("s_mov_b32 s47, 12288")
    first = [True]

    def set_inv(l):
        P("v_cmp_nle_f32 %s, %s, s40" % ("s[42:43]" if first[0] else "vcc", v(l)))
        P("v_rcp_f32 %s, %s" % (v(inv), v(l)))
        if not first[0]:
            P("s_or_b64 s[42:43], s[42:43], vcc")
        else:
            P("s_nop 0")
        first[0] = False
        P("v_mov_b32 %s, %s" % (v(inv + 1), v(inv)))

    cnt = [0]

    def conv8(src_a, src_v, swap, sink):
        x = SA + 16 * (cnt[0] % 2)
        cnt[0] += 1
        if src_a is not None:
            for i in range(8):
                P("v_accvgpr_read_b32 %s, %s" % (v(x + i), a(src_a + i)))
            src_v = x
        for i in range(4):
            P("v_pk_mul_f32 %s, %s, %s" % (v(x + 2 * i, 2), v(src_v + 2 * i, 2), v(inv, 2)))
        for i in range(4):
            P("v_cvt_pk_bf16_f32 %s, %s, %s" % (v(x + 8 + i), v(x + 2 * i), v(x + 2 * i + 1)))
        for i in range(4):
            P("v_pk_fma_f32 %s, %s, 0, %s" % (v(chk, 2), v(x + 2 * i, 2), v(chk, 2)))
        P("v_permlane%d_swap_b32 %s, %s" % (swap, v(x + 8), v(x + 10)))
        P("v_permlane%d_swap_b32 %s, %s" % (swap, v(x + 9), v(x + 11)))
        sink(x + 8)

    def out_tile(O, l0, off):
        for qt in range(2):
            set_inv(l0 + qt)
            for k in range(4):
                conv8(O + 4 * (qt * 8 + 2 * k), None, 16,
                      lambda x, k=k, qt=qt: P("ds_write_b128 %s, %s offset:%d" % (v(ST + k), v(x, 4), off + qt * 4096)))

    def unstage_reads(off, dst):
        for i in range(8):
            P("ds_read_b128 %s, %s offset:%d" % (v(dst + 4 * i, 4), v(wa), off + i * 1024))

    def unstage_stores(tile, dst):
        so = {0: "0", 1: "s38", 2: "s37", 3: "s47"}
        for i in range(8):
            P("buffer_store_dwordx4 %s, %s, s[24:27], %s offen%s" % (v(dst + 4 * i, 4), v(GA + i % 4), so[tile * 2 + i // 4], opt.nt_o))
    out_tile(OA, LR, 0)
    P("s_waitcnt lgkmcnt(0)")
    P("s_barrier")
    P.stamp(opt)
    unstage_reads(0, VF)
    P("v_lshlrev_b32 %s, 4, v2" % v(wb))
    P("v_lshl_add_u32 %s, v1, 12, %s" % (v(wb), v(wb)))
    P("v_add_u32 %s, 0x10000, %s" % (v(wb), v(wb)))
    P("v_lshlrev_b32 %s, 2, v2" % v(wl))
    P("v_add_u32 %s, 0x%x, %s" % (v(wl), LDS_X, v(wl)))
    R9 = [KF, KF + 16, K9F, V9F]
    for ws in range(4):
        P("ds_read_b32 %s, %s offset:%d" % (v(S9 + ws), v(wl), ws * 256))
    P("s_waitcnt lgkmcnt(4)")
    unstage_stores(0, VF)
    for ws in range(4):
        for q in range(4):
            P("ds_read_b128 %s, %s offset:%d" % (v(R9[ws] + 4 * q, 4), v(wb), ws * 16384 + q * 1024))
        if ws == 1:
            P("s_waitcnt lgkmcnt(6)")
    out_tile(OB, LR + 2, 8192)
    P("s_waitcnt lgkmcnt(0)")
    unstage_reads(8192, VF)
    for i in range(8):
        P("v_pk_add_f32 %s, %s, %s" % (v(R9[0] + 2 * i, 2), v(R9[0] + 2 * i, 2), v(R9[1] + 2 * i, 2)))
        P("v_pk_add_f32 %s, %s, %s" % (v(R9[2] + 2 * i, 2), v(R9[2] + 2 * i, 2), v(R9[3] + 2 * i, 2)))
    for i in range(8):
        P("v_pk_add_f32 %s, %s, %s" % (v(R9[0] + 2 * i, 2), v(R9[0] + 2 * i, 2), v(R9[2] + 2 * i, 2)))
    P("v_add_f32 %s, %s, %s" % (v(S9), v(S9), v(S9 + 1)))
    P("v_add_f32 %s, %s, %s" % (v(S9 + 2), v(S9 + 2), v(S9 + 3)))
    P("v_add_f32 %s, %s, %s" % (v(S9), v(S9), v(S9 + 2)))
    P("s_waitcnt lgkmcnt(0)")
    unstage_stores(1, VF)
    set_inv(S9)
    for gp in range(2):
        conv8(None, R9[0] + 8 * gp, 32,
              lambda x, gp=gp: P("buffer_store_dwordx4 %s, %s, s[24:27], 0 offen offset:%d%s" % (v(x, 4), v(oa9), gp * 32, opt.nt_o)))
    tt = K9F
    P.stamp(opt)
    if opt.stamps:
        P("s_waitcnt vmcnt(0)")
        P.stamp(opt)
        P.stamp(opt, True)
        P("s_mov_b32 s52, s58")
        P("s_mov_b32 s53, s59")
        P("s_mov_b32 s54, 0x100000")
        P("s_mov_b32 s55, 0x20000")
        P("s_lshl_b32 s48, s2, 2")
        P("s_add_u32 s48, s48, s3")
        P("s_lshl_b32 s48, s48, 7")
        P("v_mov_b32 %s, s48" % v(tt))
        for i in range(32):
            P("v_mov_b32 %s, s%d" % (v(tt + 1), 60 + i))
            P("buffer_store_dword %s, %s, s[52:55], 0 offen offset:%d" % (v(tt + 1), v(tt), 4 * i))
            P("s_nop 1")
        P("s_waitcnt vmcnt(0)")
    P("v_cmp_u_f32 vcc, %s, %s" % (v(chk), v(chk + 1)))
    P("s_cmp_lg_u32 s33, 0")
    P("s_cbranch_scc1 L_end")
    P("s_or_b64 s[42:43], s[42:43], vcc")
    P("s_cmp_lg_u64 s[42:43], 0")
    P("s_cselect_b32 s41, 1, 0")
    P("s_lshl_b32 s44, s3, 2")
    P("s_add_u32 s44, s44, %d" % LDS_FLAG)
    P("v_mov_b32 %s, s41" % v(tt))
    P("v_mov_b32 %s, s44" % v(tt + 1))
    P("v_mov_b32 %s, %d" % (v(tt + 2), LDS_FLAG))
    P("ds_write_b32 %s, %s" % (v(tt + 1), v(tt)))
    P("s_waitcnt lgkmcnt(0)")
    P("s_barrier")
    P("ds_read_b128 %s, %s" % (v(tt + 4, 4), v(tt + 2)))
    P("s_waitcnt lgkmcnt(0)")
    P("v_or3_b32 %s, %s, %s, %s" % (v(tt), v(tt + 4), v(tt + 5), v(tt + 6)))
    P("v_or_b32 %s, %s, %s" % (v(tt), v(tt), v(tt + 7)))
    P("s_nop 0")
    P("v_readfirstlane_b32 s41, %s" % v(tt))
    P("s_nop 3")
    P("s_cmp_eq_u32 s41, 0")
    P("s_cbranch_scc1 L_end")
    main_end = len(P.L)
    P("s_mov_b32 s33, 1")
    P("s_waitcnt vmcnt(0)")
    k9g = T0
    P("v_lshlrev_b32 %s, 8, v5" % v(k9g))
    P("v_lshl_add_u32 %s, v6, 4, %s" % (v(k9g), v(k9g)))
    for i in range(6):
        P("v_mov_b32 %s, 0xff800000" % v(MX + i))
    P("s_mov_b32 s45, 0")
    P("L_maxloop:")
    P("s_add_u32 s46, s45, 4096")
    for j in range(8):
        P("buffer_load_dwordx4 %s, %s, s[12:15], %s offen offset:%d" % (v(KF + 4 * j, 4), v(k9g), "s46" if j // 4 else "s45", (j % 4) * 64))
    P("s_waitcnt vmcnt(0)")
    for m in qk_group(SA, CMA, QA, first_c="0") + qk_group(SB, CMB, QB, first_c="0"):
        P(m)
    for kt in range(2):
        for half in range(2):
            for step in range(4):
                P(mfma_q9(half, step, kf=KF + 16 * kt, sreg=VF + 8 * kt, first_c="0"))
    P("s_nop 7")
    for i, S in enumerate((SA, SA + 8, SB, SB + 8)):
        for k in range(0, 8, 2):
            P("v_max3_f32 %s, %s, %s, %s" % (v(MX + i), v(MX + i), v(S + k), v(S + k + 1)))
    for kt in range(2):
        for half in range(2):
            s = VF + 8 * kt + 4 * half
            m = MX + 4 + half
            P("v_max3_f32 %s, %s, %s, %s" % (v(m), v(m), v(s), v(s + 1)))
            P("v_max3_f32 %s, %s, %s, %s" % (v(m), v(m), v(s + 2), v(s + 3)))
    P("s_add_u32 s45, s45, 8192")
    P("s_cmp_lt_u32 s45, 524288")
    P("s_cbranch_scc1 L_maxloop")
    P("s_barrier")
    for (isv, blk) in PRO_ORDER:
        dma_pro(P, opt, isv, blk)
    init_soff(P)
    zero_state(P)
    P("s_waitcnt vmcnt(%d)" % (2 * len(PRO_ORDER) - 2))
    P("s_barrier")
    for j in range(8):
        P("ds_read_b128 %s, %s offset:%d" % (v(KF + 4 * j, 4), v(AK + j % 4), (j // 4) * 4096))
    P("s_waitcnt lgkmcnt(0)")
    P("s_branch L_setmax")
    P("L_end:")
    P("s_endpgm")

    L = P.L
    lp0 = next(i for i, x in enumerate(L) if x.text == "L_loop:")
    probs = check(L[:loop_end] + L[lp0:main_end], "main")
    sm = next(i for i, x in enumerate(L) if x.text == "L_setmax:")
    ml = next(i for i, x in enumerate(L) if x.text == "L_maxloop:")
    me = next(i for i, x in enumerate(L) if x.text == "s_cbranch_scc1 L_maxloop")
    probs += check(L[main_end - 30:me + 1] + L[ml:-2] + L[sm:lp0 + 300], "fallback")
    if probs:
        print("PROBLEMS:", len(probs))
    hdr = "; @launch grid=(256,1,1) block=(256,1,1) lds=%d\n" % LDS_BYTES
    hdr += '.amdgcn_target "amdgcn-amd-amdhsa--gfx950"\n.text\n.globl %s\n.p2align 8\n.type %s,@function\n%s:\n' % (NAME, NAME, NAME)
    ftr = """.section .rodata,"a"
.p2align 6
.amdhsa_kernel %s
  .amdhsa_next_free_vgpr 512
  .amdhsa_next_free_sgpr 100
  .amdhsa_accum_offset 256
  .amdhsa_group_segment_fixed_size 0
  .amdhsa_kernarg_size 48
  .amdhsa_user_sgpr_count 2
  .amdhsa_user_sgpr_kernarg_segment_ptr 1
  .amdhsa_system_sgpr_workgroup_id_x 1
.end_amdhsa_kernel
""" % NAME
    txt = hdr + "\n".join(("" if x.label else "    ") + x.text for x in L) + "\n" + ftr
    open(fname, "w").write(txt)
    return len(probs)


if __name__ == "__main__":
    o = Opt()
    for kv_ in sys.argv[2:]:
        k_, val = kv_.split("=", 1)
        setattr(o, k_, eval(val))
    gen(o, sys.argv[1] if len(sys.argv) > 1 else "k4.s")
```
